```python
import torch

def _softmax(x, axis=-1):
    return torch.softmax(x, dim=axis)
def _gelu(x):
    return torch.nn.functional.gelu(x, approximate="tanh")
def _silu(x):
    return torch.nn.functional.silu(x)
def _sigmoid(x):
    return torch.sigmoid(x)
def _layernorm(x, axis=-1, eps=1e-5):
    m = x.mean(dim=axis, keepdim=True)
    v = x.var(dim=axis, keepdim=True, unbiased=False)
    return (x - m) / torch.sqrt(v + eps)
def _scatter_add(tgt, idx, src, axis=0):
    return tgt.clone().index_add_(axis, idx, src)
def _segment_sum(src, seg, n):
    out = torch.zeros((n,) + src.shape[1:], dtype=src.dtype)
    return out.index_add_(0, seg, src)
def _pad(x, pw):
    flat = tuple(v for pair in reversed(pw) for v in pair)
    return torch.nn.functional.pad(x, flat)

kernel_name = 'standalone__mixer_s_mlp__sampling'

def setup_inputs():

    _w = (lambda a: (lambda t: t.to(torch.bfloat16) if t.is_floating_point() else t)(torch.as_tensor(a)))
    B, S, D, F = 32, 32, 576, 4608
    return {
        "x":  _w((lambda *s: torch.randn(*s, dtype=torch.bfloat16) * 0.4)(B, S, D)),
        "w1": _w((lambda *s: torch.randn(*s, dtype=torch.bfloat16) * 3.2)(D, D) * (D ** -0.5)),
        "w2": _w((lambda *s: torch.randn(*s, dtype=torch.bfloat16) * 3.2)(D, D) * (D ** -0.5)),
        "w3": _w((lambda *s: torch.randn(*s, dtype=torch.bfloat16) * 3.2)(D, F) * (D ** -0.5)),
        "w4": _w((lambda *s: torch.randn(*s, dtype=torch.bfloat16) * 0.8)(F, D) * (F ** -0.5)),
    }

def reference(x, w1, w2, w3, w4):
    B, S, D = x.shape
    h = _gelu(_layernorm(x, axis=-1) @ w1)
    c = D // 4
    g0 = _pad(h[:, :, 0*c:1*c], ((0, 0), (1, 0), (0, 0)))[:, :S, :]
    g1 = _pad(h[:, :, 1*c:2*c], ((0, 0), (0, 1), (0, 0)))[:, 1:, :]
    g2 = _pad(h[:, :, 2*c:3*c], ((0, 0), (2, 0), (0, 0)))[:, :S, :]
    g3 = _pad(h[:, :, 3*c:   ], ((0, 0), (0, 2), (0, 0)))[:, 2:, :]
    hs = torch.concatenate([g0, g1, g2, g3], axis=-1) @ w2
    x1 = x + hs
    h2 = _gelu(_layernorm(x1, axis=-1) @ w3) @ w4
    return x1 + h2
```

```python
import struct

def f32bits(x):
    return struct.unpack("<I", struct.pack("<f", x))[0]

class E:
    def __init__(self):
        self.lines = []
        self.lab = 0
    def __call__(self, s):
        for l in s.strip("\n").split("\n"):
            self.lines.append("    " + l.strip() if not l.strip().endswith(":") else l.strip())
    def label(self, base="L"):
        self.lab += 1
        return f"{base}_{self.lab}"
    def text(self):
        return "\n".join(self.lines) + "\n"

def vr(a, n=1):
    return f"v{a}" if n == 1 else f"v[{a}:{a+n-1}]"
def ar(a, n=1):
    return f"a{a}" if n == 1 else f"a[{a}:{a+n-1}]"
def sr(a, n=1):
    return f"s{a}" if n == 1 else f"s[{a}:{a+n-1}]"

LOG2E = 1.4426950408889634
K0 = 0.7978845608028654
K1 = 0.044715
GC0 = -2.0 * LOG2E * K0
GC1 = GC0 * K1

HEADER = """; Kernarg layout for this problem (64 bytes, ptrs only, base s[0:1]):
"""

def kd(name, vgpr, accum, sgpr=102):
    return f""".section .rodata,"a"
.p2align 6
.amdhsa_kernel {name}
  .amdhsa_next_free_vgpr {vgpr}
  .amdhsa_next_free_sgpr {sgpr}
  .amdhsa_accum_offset {accum}
  .amdhsa_group_segment_fixed_size 0
  .amdhsa_kernarg_size 64
  .amdhsa_user_sgpr_count 2
  .amdhsa_user_sgpr_kernarg_segment_ptr 1
  .amdhsa_system_sgpr_workgroup_id_x 1
.end_amdhsa_kernel
.text
"""

def kstart(name):
    return f""".globl {name}
.p2align 8
.type {name},@function
{name}:
"""
```

```python
from gen_common import *

HBUF = 0
X1BUF = 0x120000
STBUF = 0x240000
GBUF = 0x280000
PBUF = 0xB80000
WSEND = 0x1D80000

S_X, S_W1, S_W2, S_W3, S_W4, S_OUT, S_DBG, S_WS = 16, 18, 20, 22, 24, 26, 28, 30
R_A, R_B, R_WS, R_C = 32, 36, 40, 44

def srd(e, d, base, nbytes):
    e(f"""
    s_mov_b32 s{d}, s{base}
    s_and_b32 s{d+1}, s{base+1}, 0xffff
    s_mov_b32 s{d+2}, {nbytes}
    s_mov_b32 s{d+3}, 0x20000
    """)

def prologue(e, nwg, done):
    e(f"""
    s_cmp_ge_u32 s2, {nwg}
    s_cbranch_scc1 {done}
    s_load_dwordx16 s[16:31], s[0:1], 0
    v_lshrrev_b32 v1, 6, v0
    v_and_b32 v0, 63, v0
    s_nop 0
    v_readfirstlane_b32 s3, v1
    """)

def gelu(e, x, t0, t1):
    e(f"""
    v_mul_f32 v{t0}, v{x}, v{x}
    v_fmaak_f32 v{t0}, v127, v{t0}, {hex(f32bits(GC0))}
    v_mul_f32 v{t0}, v{x}, v{t0}
    v_exp_f32 v{t0}, v{t0}
    s_nop 0
    v_add_f32 v{t0}, 1.0, v{t0}
    v_rcp_f32 v{t0}, v{t0}
    s_nop 0
    v_mul_f32 v{x}, v{x}, v{t0}
    """)

def stats_finish(e, vsum, vsq, vm, vr_, t0):
    inv = hex(f32bits(1.0 / 576.0))
    e(f"""
    v_mul_f32 v{vm}, {inv}, v{vsum}
    v_mul_f32 v{t0}, {inv}, v{vsq}
    v_fma_f32 v{t0}, -v{vm}, v{vm}, v{t0}
    v_max_f32 v{t0}, 0, v{t0}
    v_cvt_pk_bf16_f32 v{t0}, v{t0}, v{vm}
    v_and_b32 v{vm}, 0xffff0000, v{t0}
    v_lshlrev_b32 v{t0}, 16, v{t0}
    v_add_f32 v{t0}, {hex(f32bits(1e-5))}, v{t0}
    v_cvt_pk_bf16_f32 v{t0}, v{t0}, v{t0}
    v_lshlrev_b32 v{t0}, 16, v{t0}
    v_sqrt_f32 v{t0}, v{t0}
    s_nop 0
    v_cvt_pk_bf16_f32 v{t0}, v{t0}, v{t0}
    v_lshlrev_b32 v{t0}, 16, v{t0}
    v_rcp_f32 v{vr_}, v{t0}
    s_nop 0
    """)

STL = 0
XIMG = 2048
WIMG = XIMG + 36864
WREM = WIMG + 73728
AB_LDS = WREM + 9216

def gen_ab(stage):
    e = E()
    name = f"st{stage}_kernel"
    done = f"{name}_done"
    e.lines.append(kstart(name))
    prologue(e, 256, done)
    e(f"""
    s_and_b32 s4, s2, 7
    s_lshl_b32 s4, s4, 2
    s_lshr_b32 s5, s2, 6
    s_add_u32 s4, s4, s5                 ; b
    s_lshr_b32 s5, s2, 3
    s_and_b32 s5, s5, 7                  ; j
    v_mov_b32 v127, {hex(f32bits(GC1))}
    v_lshrrev_b32 v2, 5, v0              ; h
    v_and_b32 v3, 31, v0                 ; m
    s_waitcnt lgkmcnt(0)
    """)
    srd(e, R_A, S_X, 1024 * 1152)
    srd(e, R_B, S_W1 if stage == "A" else S_W2, 576 * 1152)
    srd(e, R_WS, S_WS, WSEND)
    if stage == "A":
        e(f"""
        s_lshl_b32 s6, s4, 5
        v_add_u32 v4, s6, v3
        v_mul_u32_u24 v4, 1152, v4
        v_lshl_add_u32 v4, v2, 4, v4
        s_lshl_b32 s7, s3, 5             ; soffset = 32*w
        s_lshl_b32 s8, s3, 10            ; m0 = w*1024
        s_add_u32 s8, s8, {XIMG}
        """)
        for i in range(9):
            e(f"""
            s_mov_b32 m0, s8
            s_add_u32 s8, s8, 4096
            buffer_load_dwordx4 v4, s[{R_A}:{R_A+3}], s7 offen lds
            s_add_u32 s7, s7, 128
            """)
    else:
        e(f"""
        s_mul_i32 s6, s4, 36864
        v_lshlrev_b32 v4, 4, v0
        s_lshl_b32 s8, s3, 10
        s_add_u32 s7, s6, s8
        s_add_u32 s8, s8, {XIMG}
        """)
        for i in range(9):
            e(f"""
            s_mov_b32 m0, s8
            s_add_u32 s8, s8, 4096
            buffer_load_dwordx4 v4, s[{R_WS}:{R_WS+3}], s7 offen lds
            s_add_u32 s7, s7, 4096
            """)
    e(f"""
    v_lshrrev_b32 v5, 2, v0
    v_and_b32 v5, 3, v5                  ; row
    v_lshl_add_u32 v5, v2, 2, v5         ; 4*kql+row
    v_mul_u32_u24 v5, 1152, v5
    v_bfe_u32 v6, v0, 4, 1               ; nt / G
    v_lshl_add_u32 v5, v6, 6, v5
    v_and_b32 v7, 3, v0                  ; c
    v_lshl_add_u32 v5, v7, 4, v5
    s_mul_i32 s9, s5, 144
    v_add_u32 v5, s9, v5                 ; + 144 j
    s_mul_i32 s7, s3, 9216               ; soffset = d*9216, d = w + 4i
    s_lshl_b32 s8, s3, 10
    s_add_u32 s8, s8, {WIMG}
    """)
    for i in range(18):
        e(f"""
        s_mov_b32 m0, s8
        s_add_u32 s8, s8, 4096
        buffer_load_dwordx4 v5, s[{R_B}:{R_B+3}], s7 offen lds
        s_add_u32 s7, s7, {4*9216}
        """)
    e(f"""
    v_mul_u32_u24 v8, 1152, v0
    v_add_u32 v8, s9, v8
    v_add_u32 v8, 128, v8
    """)
    for i in range(3):
        e(f"""
        s_add_u32 s10, s3, {4*i}
        s_min_u32 s10, s10, 8
        s_lshl_b32 s8, s10, 10
        s_add_u32 s8, s8, {WREM}
        s_mov_b32 m0, s8
        s_mul_i32 s7, s10, {64*1152}
        buffer_load_dwordx4 v8, s[{R_B}:{R_B+3}], s7 offen lds
        """)
    if stage == "B":
        e(f"""
        s_lshl_b32 s6, s4, 5
        v_add_u32 v9, s6, v3
        v_mul_u32_u24 v9, 1152, v9
        v_lshl_add_u32 v9, v2, 4, v9
        s_lshl_b32 s10, s3, 6
        s_add_u32 s10, s10, s9
        v_add_u32 v9, s10, v9
        buffer_load_dwordx4 v[64:67], v9, s[{R_A}:{R_A+3}], 0 offen
        buffer_load_dwordx4 v[68:71], v9, s[{R_A}:{R_A+3}], 0 offen offset:32
        """)
    e(f"""
    v_bfe_u32 v10, v0, 2, 2              ; r
    v_lshrrev_b32 v11, 1, v7             ; c>>1
    v_and_b32 v12, 1, v7                 ; c&1
    v_lshlrev_b32 v13, 10, v2
    v_lshl_add_u32 v13, v10, 6, v13
    v_lshl_add_u32 v13, v6, 5, v13
    v_lshl_add_u32 v13, v12, 4, v13
    v_lshl_add_u32 v13, v11, 3, v13
    s_lshl_b32 s10, s3, 8
    s_add_u32 s10, s10, {WIMG}
    v_add_u32 v13, s10, v13
    v_lshlrev_b32 v14, 7, v2
    v_lshl_add_u32 v14, v10, 4, v14
    v_lshl_add_u32 v14, v11, 3, v14
    v_add_u32 v14, {WREM}, v14
    s_movk_i32 s11, 2048
    s_cmp_eq_u32 s3, 2
    s_cselect_b32 s11, 256, s11
    s_cselect_b32 s12, 64, 512           ; t offset
    s_cselect_b64 vcc, -1, 0
    s_nop 1
    v_cndmask_b32 v13, v13, v14, vcc
    v_add_u32 v14, s12, v13
    v_lshlrev_b32 v15, 4, v0
    v_mov_b32 v16, 0x3f803f80
    v_mov_b32 v17, 0
    v_mov_b32 v18, 0
    """)
    for r in range(16):
        e(f"v_mov_b32 v{32+r}, 0")
    e(f"""
    s_waitcnt vmcnt(0)
    s_barrier
    s_cmp_eq_u32 s3, 3
    s_cbranch_scc1 {name}_w3
    """)
    A = [20, 24]; B = [48, 52]
    def rd(s):
        a = A[s & 1]; b = B[s & 1]
        e(f"""
        ds_read_b64_tr_b16 v[{a}:{a+1}], v13
        ds_read_b64_tr_b16 v[{a+2}:{a+3}], v14
        ds_read_b128 v[{b}:{b+3}], v15 offset:{XIMG + s*1024}
        v_add_u32 v13, s11, v13
        v_add_u32 v14, s11, v14
        """)
    rd(0)
    for s in range(36):
        if s + 1 < 36:
            rd(s + 1)
            e("s_waitcnt lgkmcnt(3)")
        else:
            e("s_waitcnt lgkmcnt(0)")
        a = A[s & 1]; b = B[s & 1]
        e(f"v_mfma_f32_32x32x16_bf16 v[32:47], v[{a}:{a+3}], v[{b}:{b+3}], v[32:47]")
        if stage == "A":
            for k in range(4):
                e(f"v_dot2_f32_bf16 v17, v{a+k}, v16, v17")
    if stage == "A":
        e(f"""
        s_barrier
        v_lshlrev_b32 v19, 3, v3
        ds_read_b64 v[20:21], v19 offset:{STL}
        ds_read_b64 v[22:23], v19 offset:{STL+256}
        s_waitcnt lgkmcnt(0)
        v_add_f32 v20, v20, v22
        v_add_f32 v21, v21, v23
        """)
        stats_finish(e, 20, 21, 22, 23, 24)
        e(f"""
        v_and_b32 v24, 0xffff0000, v17
        v_sub_f32 v25, v17, v24
        v_cvt_pk_bf16_f32 v24, v24, v25
        v_mov_b32 v25, 0
        v_mov_b32 v26, 0
        v_mov_b32 v27, 0
        v_cvt_pk_bf16_f32 v48, -v22, -v22
        v_mov_b32 v49, 0
        v_mov_b32 v50, 0
        v_mov_b32 v51, 0
        s_nop 1
        v_mfma_f32_32x32x16_bf16 v[32:47], v[24:27], v[48:51], v[32:47]
        s_nop 15
        """)
        for p in range(8):
            x0, x1 = 32 + 2 * p, 33 + 2 * p
            e(f"""
            v_mul_f32 v{x0}, v{x0}, v23
            v_mul_f32 v{x1}, v{x1}, v23
            v_cvt_pk_bf16_f32 v{x1}, v{x0}, v{x1}
            v_lshlrev_b32 v{x0}, 16, v{x1}
            v_and_b32 v{x1}, 0xffff0000, v{x1}
            """)
            gelu(e, x0, 20, 21)
            gelu(e, x1, 20, 21)
            e(f"v_cvt_pk_bf16_f32 v{56+p}, v{x0}, v{x1}")
        e(f"""
        s_lshr_b32 s10, s5, 1               ; group
        s_and_b32 s11, s10, 1
        s_lshr_b32 s12, s10, 1
        s_add_u32 s12, s12, 1               ; magnitude
        s_sub_u32 s13, 0, s12
        s_cmp_eq_u32 s11, 1
        s_cselect_b32 s12, s13, s12         ; shift
        v_add_u32 v20, s12, v3              ; dest
        v_cmp_gt_u32 vcc, 32, v20
        v_and_b32 v20, 31, v20
        s_nop 0
        """)
        for p in range(8):
            e(f"v_cndmask_b32 v{56+p}, 0, v{56+p}, vcc")
        e(f"s_mov_b32 s14, {HBUF}")
    else:
        e("s_nop 15")
        for p in range(8):
            x0, x1 = 32 + 2 * p, 33 + 2 * p
            xr = 64 + p
            e(f"""
            v_cvt_pk_bf16_f32 v{x1}, v{x0}, v{x1}
            v_lshlrev_b32 v{x0}, 16, v{x1}
            v_and_b32 v{x1}, 0xffff0000, v{x1}
            v_lshlrev_b32 v20, 16, v{xr}
            v_and_b32 v21, 0xffff0000, v{xr}
            v_add_f32 v{x0}, v{x0}, v20
            v_add_f32 v{x1}, v{x1}, v21
            v_cvt_pk_bf16_f32 v{56+p}, v{x0}, v{x1}
            """)
        e(f"""
        v_mov_b32 v20, v3
        s_mov_b32 s14, {X1BUF}
        """)
    e(f"""
    s_mul_i32 s10, s4, 36864
    s_add_u32 s14, s14, s10
    s_mul_i32 s10, s5, 9
    s_lshl_b32 s11, s3, 2
    s_add_u32 s10, s10, s11
    s_lshl_b32 s10, s10, 9
    s_add_u32 s14, s14, s10
    v_lshlrev_b32 v21, 9, v2
    v_lshl_add_u32 v21, v20, 4, v21
    v_add_u32 v21, s14, v21
    v_add_u32 v22, 1024, v21
    s_cmp_eq_u32 s3, 2
    s_cselect_b64 s[62:63], -1, 0
    v_cmp_eq_u32 vcc, 1, v2
    s_and_b64 vcc, vcc, s[62:63]
    v_mov_b32 v23, 0x7ff00000
    s_nop 1
    v_cndmask_b32 v21, v21, v23, vcc
    v_cndmask_b32 v22, v22, v23, s[62:63]
    buffer_store_dwordx4 v[56:59], v21, s[{R_WS}:{R_WS+3}], 0 offen
    buffer_store_dwordx4 v[60:63], v22, s[{R_WS}:{R_WS+3}], 0 offen
    """)
    if stage == "B":
        e("s_nop 1")
        for p in range(4):
            e(f"v_cndmask_b32 v{56+p}, v{56+p}, 0, vcc")
        for p in range(4, 8):
            e(f"v_cndmask_b32 v{56+p}, v{56+p}, 0, s[62:63]")
        for p in range(8):
            e(f"v_dot2_f32_bf16 v17, v{56+p}, v16, v17")
        for p in range(8):
            e(f"v_dot2_f32_bf16 v18, v{56+p}, v{56+p}, v18")
        e(f"""
        s_lshl_b32 s10, s3, 9
        v_lshlrev_b32 v19, 3, v0
        v_add_u32 v19, s10, v19
        s_nop 2
        v_mov_b32 v24, v17
        v_mov_b32 v25, v18
        ds_write_b64 v19, v[24:25] offset:{STL}
        s_waitcnt lgkmcnt(0)
        s_barrier
        """)
    e(f"s_branch {done}")
    e(f"{name}_w3:")
    if stage == "A":
        for s in range(0, 36, 4):
            for u in range(4):
                e(f"ds_read_b128 v[{20+4*u}:{23+4*u}], v15 offset:{XIMG + (s+u)*1024}")
            for u in range(4):
                e(f"s_waitcnt lgkmcnt({3-u})")
                for k in range(4):
                    e(f"v_dot2_f32_bf16 v17, v{20+4*u+k}, v16, v17")
                for k in range(4):
                    e(f"v_dot2_f32_bf16 v18, v{20+4*u+k}, v{20+4*u+k}, v18")
        e(f"""
        v_lshlrev_b32 v19, 3, v0
        s_nop 2
        v_mov_b32 v24, v17
        v_mov_b32 v25, v18
        ds_write_b64 v19, v[24:25] offset:{STL}
        s_waitcnt lgkmcnt(0)
        s_barrier
        """)
    else:
        e(f"""
        s_barrier
        v_lshlrev_b32 v19, 3, v3
        """)
        for i in range(6):
            e(f"ds_read_b64 v[{20+2*i}:{21+2*i}], v19 offset:{STL + 256*i}")
        e("s_waitcnt lgkmcnt(0)")
        for i in range(1, 6):
            e(f"v_add_f32 v20, v20, v{20+2*i}\nv_add_f32 v21, v21, v{21+2*i}")
        e(f"""
        s_lshl_b32 s10, s4, 5
        v_add_u32 v22, s10, v3
        v_lshlrev_b32 v22, 6, v22
        s_lshl_b32 s10, s5, 3
        s_add_u32 s10, s10, {STBUF}
        v_add_u32 v22, s10, v22
        buffer_store_dwordx2 v[20:21], v22, s[{R_WS}:{R_WS+3}], 0 offen
        """)
    e(f"{done}:")
    e("s_endpgm")
    return e.text(), kd(name, 128, 128)

CD_REM1 = 136 * 1024
CD_STL = 147456
CD_R2 = 148480
CD_LDS = CD_R2 + 9216

def gen_cd(stage):
    e = E()
    name = f"st{stage}_kernel"
    done = f"{name}_done"
    e.lines.append(kstart(name))
    prologue(e, 256, done)
    pitch = 9216 if stage == "C" else 1152
    e(f"""
    s_and_b32 s4, s2, 7                  ; xcd
    s_lshr_b32 s5, s2, 3
    s_and_b32 s6, s5, 3                  ; idx&3
    s_lshr_b32 s5, s5, 2                 ; rb
    v_mov_b32 v127, {hex(f32bits(GC1))}
    v_lshrrev_b32 v2, 5, v0              ; h
    v_and_b32 v3, 31, v0                 ; m
    v_lshrrev_b32 v4, 4, v0              ; q
    v_and_b32 v5, 15, v0                 ; m16
    v_bfe_u32 v6, v0, 4, 1               ; G
    v_and_b32 v7, 3, v0                  ; c
    v_bfe_u32 v8, v0, 2, 2               ; r
    s_waitcnt lgkmcnt(0)
    """)
    if stage == "C":
        srd(e, R_B, S_W3, 576 * 9216)
        e(f"""
        s_lshl_b32 s7, s4, 2
        s_add_u32 s7, s7, s6             ; fb
        s_mul_i32 s8, s7, 288
        """)
    else:
        srd(e, R_B, S_W4, 4608 * 1152)
        e(f"""
        s_mul_i32 s8, s4, {576*1152}
        s_mul_i32 s7, s6, 288
        s_add_u32 s8, s8, s7
        """)
    srd(e, R_WS, S_WS, WSEND)
    e(f"""
    v_mul_u32_u24 v9, {pitch}, v8
    v_lshl_add_u32 v9, v4, 6, v9
    v_lshl_add_u32 v9, v7, 4, v9
    v_add_u32 v9, s8, v9
    v_lshrrev_b32 v10, 1, v0
    v_mul_u32_u24 v10, {pitch}, v10
    v_and_b32 v11, 1, v0
    v_lshl_add_u32 v10, v11, 4, v10
    v_add_u32 v10, s8, v10
    v_add_u32 v10, 256, v10
    s_mul_i32 s9, s3, {4*pitch}
    s_lshl_b32 s10, s3, 10               ; m0
    s_mov_b32 s11, 0
    """)
    lp = e.label(name)
    e(f"""
    {lp}:
    s_mov_b32 m0, s10
    s_add_u32 s10, s10, 4096
    buffer_load_dwordx4 v9, s[{R_B}:{R_B+3}], s9 offen lds
    s_add_u32 s9, s9, {16*pitch}
    s_add_u32 s11, s11, 1
    s_cmp_lt_u32 s11, 34
    s_cbranch_scc1 {lp}
    """)
    for i in range(5):
        e(f"""
        s_add_u32 s11, s3, {4*i}
        s_min_u32 s11, s11, 16
        s_lshl_b32 s10, s11, 10
        s_add_u32 s10, s10, {CD_REM1}
        s_mov_b32 m0, s10
        s_mul_i32 s12, s11, {32*pitch}
        buffer_load_dwordx4 v10, s[{R_B}:{R_B+3}], s12 offen lds
        """)
    e(f"""
    v_lshrrev_b32 v11, 1, v7             ; c>>1
    v_and_b32 v12, 1, v7                 ; c&1
    v_lshlrev_b32 v13, 11, v2
    v_lshl_add_u32 v13, v8, 6, v13
    v_lshl_add_u32 v13, v6, 5, v13
    v_lshl_add_u32 v13, v12, 4, v13
    v_lshl_add_u32 v13, v11, 3, v13
    s_lshl_b32 s10, s3, 8
    v_add_u32 v13, s10, v13
    v_add_u32 v14, 0x10000, v13
    v_add_u32 v15, 0x20000, v13
    v_lshlrev_b32 v16, 8, v4             ; rem: q*256 + r*32 + c*8
    v_lshl_add_u32 v16, v8, 5, v16
    v_lshl_add_u32 v16, v7, 3, v16
    v_add_u32 v17, {CD_REM1}, v16
    v_add_u32 v18, {CD_R2}, v13
    v_add_u32 v19, {CD_R2+8192}, v16
    s_waitcnt vmcnt(0)
    s_barrier
    """)
    n = 0
    for s in range(34):
        for t in range(2):
            off = 4096 * s + 1024 * t
            e(f"ds_read_b64_tr_b16 a[{4*s+2*t}:{4*s+2*t+1}], v{13 + off//65536} offset:{off % 65536}")
            n += 1
            if n % 8 == 0:
                e("s_waitcnt lgkmcnt(4)")
    for s in range(17):
        for t in range(2):
            e(f"ds_read_b64_tr_b16 a[{144+4*s+2*t}:{144+4*s+2*t+1}], v17 offset:{1024*s + 128*t}")
            n += 1
            if n % 8 == 0:
                e("s_waitcnt lgkmcnt(4)")
    e(f"""
    s_waitcnt lgkmcnt(0)
    s_barrier
    """)
    e(f"""
    s_mul_i32 s9, s3, {4*pitch}
    s_add_u32 s9, s9, {136*4*pitch}
    s_lshl_b32 s10, s3, 10
    s_add_u32 s10, s10, {CD_R2}
    s_mov_b32 m0, s10
    s_add_u32 s10, s10, 4096
    buffer_load_dwordx4 v9, s[{R_B}:{R_B+3}], s9 offen lds
    s_add_u32 s9, s9, {16*pitch}
    s_mov_b32 m0, s10
    s_mov_b32 s12, {17*32*pitch}
    buffer_load_dwordx4 v9, s[{R_B}:{R_B+3}], s9 offen lds
    s_mov_b32 m0, {CD_R2+8192}
    s_nop 0
    buffer_load_dwordx4 v10, s[{R_B}:{R_B+3}], s12 offen lds
    """)
    if stage == "C":
        e(f"""
        s_lshl_b32 s9, s5, 2
        s_add_u32 s9, s9, s3
        s_mul_i32 s9, s9, 36864
        s_add_u32 s9, s9, {X1BUF}
        """)
    else:
        e(f"""
        s_lshl_b32 s9, s5, 2
        s_add_u32 s9, s9, s3
        s_mul_i32 s9, s9, 294912
        s_mul_i32 s10, s4, 36864
        s_add_u32 s9, s9, s10
        s_add_u32 s9, s9, {GBUF}
        """)
    e(f"""
    s_mul_i32 s10, s3, 36864
    v_lshlrev_b32 v20, 4, v0
    """)
    for i in range(9):
        e(f"""
        s_mov_b32 m0, s10
        s_add_u32 s10, s10, 4096
        buffer_load_dwordx4 v20, s[{R_WS}:{R_WS+3}], s9 offen lds
        buffer_load_dwordx4 v20, s[{R_WS}:{R_WS+3}], s9 offen offset:1024 lds
        buffer_load_dwordx4 v20, s[{R_WS}:{R_WS+3}], s9 offen offset:2048 lds
        buffer_load_dwordx4 v20, s[{R_WS}:{R_WS+3}], s9 offen offset:3072 lds
        s_add_u32 s9, s9, 4096
        """)
    if stage == "C":
        e(f"""
        s_lshl_b32 s9, s5, 2
        s_add_u32 s9, s9, s3
        s_lshl_b32 s9, s9, 5
        v_add_u32 v21, s9, v3
        v_lshlrev_b32 v21, 6, v21
        v_add_u32 v21, {STBUF}, v21
        buffer_load_dwordx4 v[32:35], v21, s[{R_WS}:{R_WS+3}], 0 offen
        buffer_load_dwordx4 v[36:39], v21, s[{R_WS}:{R_WS+3}], 0 offen offset:16
        buffer_load_dwordx4 v[40:43], v21, s[{R_WS}:{R_WS+3}], 0 offen offset:32
        buffer_load_dwordx4 v[44:47], v21, s[{R_WS}:{R_WS+3}], 0 offen offset:48
        s_waitcnt vmcnt(0)
        """)
        for i in range(1, 8):
            e(f"v_add_f32 v32, v32, v{32+2*i}\nv_add_f32 v33, v33, v{33+2*i}")
        stats_finish(e, 32, 33, 34, 35, 36)
        e(f"""
        s_lshl_b32 s9, s3, 8
        v_lshlrev_b32 v21, 3, v3
        v_add_u32 v21, s9, v21
        v_add_u32 v21, {CD_STL}, v21
        ds_write_b64 v21, v[34:35]
        """)
    e(f"""
    s_waitcnt vmcnt(0) lgkmcnt(0)
    s_barrier
    """)
    for s in range(34, 36):
        for t in range(2):
            e(f"ds_read_b64_tr_b16 a[{4*s+2*t}:{4*s+2*t+1}], v18 offset:{4096*(s-34) + 1024*t}")
    for t in range(2):
        e(f"ds_read_b64_tr_b16 a[{144+68+2*t}:{144+68+2*t+1}], v19 offset:{128*t}")
    e("s_waitcnt lgkmcnt(0)")
    if stage == "C":
        e("""
        v_mov_b32 v24, 0x3f803f80
        v_mov_b32 v25, 0x3f803f80
        v_mov_b32 v26, 0x3f803f80
        v_mov_b32 v27, 0x3f803f80
        s_nop 1
        """)
        for s in range(36):
            c = "0" if s == 0 else "v[32:47]"
            e(f"v_mfma_f32_32x32x16_bf16 v[32:47], v[24:27], a[{4*s}:{4*s+3}], {c}")
        for s in range(18):
            c = "0" if s == 0 else "v[48:51]"
            e(f"v_mfma_f32_16x16x32_bf16 v[48:51], v[24:27], a[{144+4*s}:{144+4*s+3}], {c}")
        e(f"""
        s_nop 15
        v_and_b32 v24, 0xffff0000, v32
        v_sub_f32 v25, v32, v24
        v_cvt_pk_bf16_f32 v24, v24, v25
        v_cmp_eq_u32 vcc, 0, v2
        v_and_b32 v28, 0xffff0000, v48
        v_sub_f32 v29, v48, v28
        v_cndmask_b32 v24, 0, v24, vcc
        v_cvt_pk_bf16_f32 v28, v28, v29
        v_cmp_eq_u32 vcc, 0, v4
        v_mov_b32 v25, 0
        v_mov_b32 v26, 0
        v_cndmask_b32 v28, 0, v28, vcc
        v_mov_b32 v27, 0
        v_mov_b32 v29, 0
        v_mov_b32 v30, 0
        v_mov_b32 v31, 0
        """)
    if stage == "C":
        e(f"""
        s_mul_i32 s9, s5, {4*294912}
        s_mul_i32 s10, s7, {18*512}
        s_add_u32 s9, s9, s10
        s_add_u32 s9, s9, {GBUF}
        s_lshl_b32 s10, s3, 11
        s_add_u32 s10, s10, s9            ; + 4w*512
        v_lshlrev_b32 v21, 4, v0          ; h*512 + m*16
        v_add_u32 v21, s10, v21
        s_mov_b32 s13, 294912
        s_mul_i32 s10, s3, 294912
        s_add_u32 s10, s10, s9
        s_add_u32 s10, s10, {16*512}
        v_lshrrev_b32 v22, 1, v4
        v_lshlrev_b32 v22, 9, v22
        v_and_b32 v23, 1, v4
        v_lshl_add_u32 v22, v23, 3, v22
        v_lshl_add_u32 v22, v5, 4, v22
        v_add_u32 v22, s10, v22
        """)
    else:
        e(f"""
        s_lshl_b32 s9, s5, 2
        s_add_u32 s9, s9, s6
        s_lshl_b32 s9, s9, 3
        s_add_u32 s9, s9, s4
        s_mul_i32 s9, s9, 73728
        s_add_u32 s9, s9, {PBUF}
        s_lshl_b32 s10, s3, 12            ; 4w*1024
        s_add_u32 s10, s10, s9
        v_lshlrev_b32 v21, 10, v2         ; h*1024
        v_lshl_add_u32 v21, v3, 4, v21
        v_add_u32 v21, s10, v21
        s_mov_b32 s13, 18432
        s_mul_i32 s10, s3, 18432
        s_add_u32 s10, s10, s9
        s_add_u32 s10, s10, {16*1024}
        v_lshlrev_b32 v22, 9, v4
        v_lshl_add_u32 v22, v5, 4, v22
        v_add_u32 v22, s10, v22
        """)
    e(f"""
    v_lshlrev_b32 v23, 3, v3
    v_add_u32 v23, {CD_STL}, v23
    s_mov_b32 s11, 0
    """)
    lp = e.label(name)
    e(f"{lp}:")
    B = [52, 56, 60]
    e(f"ds_read_b128 v[{B[0]}:{B[0]+3}], v20")
    e(f"ds_read_b128 v[{B[1]}:{B[1]+3}], v20 offset:1024")
    for s in range(36):
        if s + 2 < 36:
            b = B[(s + 2) % 3]
            e(f"ds_read_b128 v[{b}:{b+3}], v20 offset:{(s+2)*1024}")
            e("s_waitcnt lgkmcnt(2)")
        else:
            e(f"s_waitcnt lgkmcnt({35-s})")
        b = B[s % 3]
        c = "0" if s == 0 else "v[32:47]"
        e(f"v_mfma_f32_32x32x16_bf16 v[32:47], a[{4*s}:{4*s+3}], v[{b}:{b+3}], {c}")
    if stage == "C":
        e(f"""
        ds_read_b64 v[64:65], v23
        s_waitcnt lgkmcnt(0)
        v_cvt_pk_bf16_f32 v52, -v64, -v64
        v_mov_b32 v53, 0
        v_mov_b32 v54, 0
        v_mov_b32 v55, 0
        s_nop 1
        v_mfma_f32_32x32x16_bf16 v[32:47], v[24:27], v[52:55], v[32:47]
        s_nop 15
        """)
        for p in range(8):
            x0, x1 = 32 + 2 * p, 33 + 2 * p
            e(f"""
            v_mul_f32 v{x0}, v{x0}, v65
            v_mul_f32 v{x1}, v{x1}, v65
            v_cvt_pk_bf16_f32 v{x1}, v{x0}, v{x1}
            v_lshlrev_b32 v{x0}, 16, v{x1}
            v_and_b32 v{x1}, 0xffff0000, v{x1}
            """)
            gelu(e, x0, 66, 67)
            gelu(e, x1, 66, 67)
            e(f"v_cvt_pk_bf16_f32 v{68+p}, v{x0}, v{x1}")
        e(f"""
        buffer_store_dwordx4 v[68:71], v21, s[{R_WS}:{R_WS+3}], 0 offen
        buffer_store_dwordx4 v[72:75], v21, s[{R_WS}:{R_WS+3}], 0 offen offset:1024
        v_add_u32 v23, 256, v23
        """)
    else:
        e(f"""
        s_nop 15
        buffer_store_dwordx4 v[32:35], v21, s[{R_WS}:{R_WS+3}], 0 offen
        buffer_store_dwordx4 v[36:39], v21, s[{R_WS}:{R_WS+3}], 0 offen offset:512
        buffer_store_dwordx4 v[40:43], v21, s[{R_WS}:{R_WS+3}], 0 offen offset:2048
        buffer_store_dwordx4 v[44:47], v21, s[{R_WS}:{R_WS+3}], 0 offen offset:2560
        s_nop 3
        """)
    e(f"""
    v_add_u32 v21, s13, v21
    v_add_u32 v20, 36864, v20
    s_add_u32 s11, s11, 1
    s_cmp_lt_u32 s11, 4
    s_cbranch_scc1 {lp}
    """)
    e(f"""
    s_mul_i32 s9, s3, 36864
    v_lshlrev_b32 v20, 9, v4
    v_lshl_add_u32 v20, v5, 4, v20
    v_add_u32 v20, s9, v20
    s_lshl_b32 s9, s3, 8
    v_lshlrev_b32 v23, 3, v5
    v_add_u32 v23, s9, v23
    v_add_u32 v23, {CD_STL}, v23
    """)
    for u in range(2):
        acc = 32 + 4 * u
        for s in range(18):
            b = B[s % 3]
            e(f"ds_read_b128 v[{b}:{b+3}], v20 offset:{s*2048 + u*256}")
            e("s_waitcnt lgkmcnt(0)")
            c = "0" if s == 0 else f"v[{acc}:{acc+3}]"
            e(f"v_mfma_f32_16x16x32_bf16 v[{acc}:{acc+3}], a[{144+4*s}:{144+4*s+3}], v[{b}:{b+3}], {c}")
        if stage == "C":
            e(f"""
            ds_read_b64 v[64:65], v23 offset:{128*u}
            s_waitcnt lgkmcnt(0)
            v_cvt_pk_bf16_f32 v76, -v64, -v64
            v_mov_b32 v77, 0
            v_mov_b32 v78, 0
            v_mov_b32 v79, 0
            s_nop 1
            v_mfma_f32_16x16x32_bf16 v[{acc}:{acc+3}], v[28:31], v[76:79], v[{acc}:{acc+3}]
            s_nop 15
            """)
            for p in range(2):
                x0, x1 = acc + 2 * p, acc + 1 + 2 * p
                e(f"""
                v_mul_f32 v{x0}, v{x0}, v65
                v_mul_f32 v{x1}, v{x1}, v65
                v_cvt_pk_bf16_f32 v{x1}, v{x0}, v{x1}
                v_lshlrev_b32 v{x0}, 16, v{x1}
                v_and_b32 v{x1}, 0xffff0000, v{x1}
                """)
                gelu(e, x0, 66, 67)
                gelu(e, x1, 66, 67)
                e(f"v_cvt_pk_bf16_f32 v{68+2*u+p}, v{x0}, v{x1}")
            e(f"buffer_store_dwordx2 v[{68+2*u}:{69+2*u}], v22, s[{R_WS}:{R_WS+3}], 0 offen offset:{256*u}")
        else:
            e(f"""
            s_nop 15
            buffer_store_dwordx4 v[{acc}:{acc+3}], v22, s[{R_WS}:{R_WS+3}], 0 offen offset:{256*u}
            """)
    e(f"{done}:")
    e("s_endpgm")
    return e.text(), kd(name, 128 + 216, 128)

def gen_r():
    e = E()
    name = "stR_kernel"
    done = f"{name}_done"
    e.lines.append(kstart(name))
    prologue(e, 288, done)
    e(f"""
    s_lshl_b32 s4, s2, 2
    s_add_u32 s4, s4, s3
    s_mul_hi_u32 s5, s4, {(2**32 + 35)//36}   ; tt
    s_mul_i32 s6, s5, 36
    s_sub_u32 s6, s4, s6                 ; op
    s_mul_hi_u32 s7, s6, {(2**32 + 8)//9}
    s_mul_i32 s8, s7, 9
    s_sub_u32 s8, s6, s8
    s_lshr_b32 s9, s5, 2                 ; rb
    s_and_b32 s10, s5, 3                 ; t
    v_lshrrev_b32 v2, 5, v0
    v_and_b32 v3, 31, v0
    s_waitcnt lgkmcnt(0)
    """)
    srd(e, R_WS, S_WS, WSEND)
    srd(e, R_C, S_OUT, 1024 * 1152)
    e(f"""
    s_lshl_b32 s11, s9, 2
    s_add_u32 s11, s11, s7
    s_mul_i32 s11, s11, {8*73728}
    s_mul_i32 s12, s10, 18432
    s_add_u32 s11, s11, s12
    s_lshl_b32 s12, s8, 11
    s_add_u32 s11, s11, s12
    s_add_u32 s11, s11, {PBUF}
    v_lshlrev_b32 v4, 10, v2
    v_lshl_add_u32 v4, v3, 4, v4
    """)
    for ks in range(8):
        e(f"""
        buffer_load_dwordx4 v[{16+8*ks}:{19+8*ks}], v4, s[{R_WS}:{R_WS+3}], s11 offen
        buffer_load_dwordx4 v[{20+8*ks}:{23+8*ks}], v4, s[{R_WS}:{R_WS+3}], s11 offen offset:512
        s_add_u32 s11, s11, 73728
        """)
    e(f"""
    s_mul_i32 s12, s5, 36864
    s_lshl_b32 s13, s6, 10
    s_add_u32 s12, s12, s13
    s_add_u32 s12, s12, {X1BUF}
    v_lshlrev_b32 v5, 4, v0
    buffer_load_dwordx4 v[8:11], v5, s[{R_WS}:{R_WS+3}], s12 offen
    s_lshl_b32 s12, s5, 5
    v_add_u32 v6, s12, v3
    v_mul_u32_u24 v6, 1152, v6
    v_lshl_add_u32 v6, v2, 4, v6
    s_lshl_b32 s13, s6, 5
    v_add_u32 v6, s13, v6
    s_waitcnt vmcnt(0)
    """)
    for ks in range(1, 8):
        for i in range(8):
            e(f"v_add_f32 v{16+i}, v{16+i}, v{16+8*ks+i}")
    for p in range(4):
        x0, x1 = 16 + 2 * p, 17 + 2 * p
        e(f"""
        v_cvt_pk_bf16_f32 v{x1}, v{x0}, v{x1}
        v_lshlrev_b32 v{x0}, 16, v{x1}
        v_and_b32 v{x1}, 0xffff0000, v{x1}
        v_lshlrev_b32 v12, 16, v{8+p}
        v_and_b32 v13, 0xffff0000, v{8+p}
        v_add_f32 v{x0}, v{x0}, v12
        v_add_f32 v{x1}, v{x1}, v13
        v_cvt_pk_bf16_f32 v{24+p}, v{x0}, v{x1}
        """)
    e(f"buffer_store_dwordx4 v[24:27], v6, s[{R_C}:{R_C+3}], 0 offen")
    e(f"{done}:")
    e("s_endpgm")
    return e.text(), kd(name, 96, 96)

def main(path):
    parts = [gen_ab("A"), gen_ab("B"), gen_cd("C"), gen_cd("D"), gen_r()]
    s = HEADER
    s += f"; @launch kernel=stA_kernel grid=(256,1,1) block=(256,1,1) lds={AB_LDS}\n"
    s += f"; @launch kernel=stB_kernel grid=(256,1,1) block=(256,1,1) lds={AB_LDS}\n"
    s += f"; @launch kernel=stC_kernel grid=(256,1,1) block=(256,1,1) lds={CD_LDS}\n"
    s += f"; @launch kernel=stD_kernel grid=(256,1,1) block=(256,1,1) lds={CD_LDS}\n"
    s += f"; @launch kernel=stR_kernel grid=(288,1,1) block=(256,1,1) lds=0\n"
    s += '.amdgcn_target "amdgcn-amd-amdhsa--gfx950"\n.text\n'
    for t, _ in parts:
        s += t
    for _, k in parts:
        s += k
    open(path, "w").write(s)

if __name__ == "__main__":
    import sys
    main(sys.argv[1] if len(sys.argv) > 1 else "v1.s")
```

```python
from gen_common import *
import sys, re

NAME = "standalone__mixer_s_mlp__sampling_kernel"
HBUF = 0
X1BUF = 0x120000
STBUF = 0x240000
CSBUF = 0x260000
FH = 0x270000
FX = 0x271000
FCS = 0x272000
FG = 0x274000
FP = 0x280000
GBUF = 0x300000
PBUF = 0xC00000
WSEND = 0x1600000
STAMPBUF = 0x1E00000

S_X, S_W1, S_W2, S_W3, S_W4, S_OUT, S_DBG, S_WS = 16, 18, 20, 22, 24, 26, 28, 30
R_X, R_W1, R_W2, R_W3, R_W4, R_WS, R_OUT, R_DBG = 32, 36, 40, 44, 48, 52, 56, 60
sXCD, sIDX, sRG, sJ, sSIG, sRB = 4, 5, 6, 7, 8, 9
sNON = 10
vL, vQ, vM, vZERO = 0, 1, 2, 3
vT0, vT1, vT2 = 4, 5, 6
vTR = 7
vL16 = 10
vW4A, vW4B, vW4Bb, vW4C = 11, 12, 13, 14
vTR4 = 15
vONE = 18
vFL = 20
vFA = 22
vNON = 24
vU0, vU1, vU2 = 26, 27, 28
vTMPA, vTMPB, vTMPC = 29, 30, 31
XF = 32
AF = 104
ACC = 136
TMP = 208

R0, R1, R2 = 0, 55296, 110592
LDS_TOTAL = 163840
STAMPS = False

class G(E):
    def __init__(self):
        super().__init__()
        self.vm = []
        self.nstamp = 0
    def vmem(self, s, tag="x"):
        self(s)
        self.vm.append(tag)
    def wait_vm(self, tag, extra=""):
        idx = [i for i, t in enumerate(self.vm) if t == tag]
        if not idx:
            return None
        n = len(self.vm) - 1 - idx[-1]
        self.vm = self.vm[idx[-1] + 1:]
        assert n <= 63
        return f"s_waitcnt vmcnt({n})"
    def wait_vm_now(self, tag):
        w = self.wait_vm(tag)
        if w: self(w)
    def wait_all(self):
        self("s_waitcnt vmcnt(0)")
        self.vm = []
    def stamp(self, i):
        if STAMPS:
            self(f"s_memrealtime s[{64+2*i}:{65+2*i}]")

def srd(e, d, base, nbytes):
    e(f"""
    s_mov_b32 s{d}, s{base}
    s_and_b32 s{d+1}, s{base+1}, 0xffff
    s_mov_b32 s{d+2}, {nbytes}
    s_mov_b32 s{d+3}, 0x20000
    """)

def R(r): return f"s[{r}:{r+3}]"

def lds_addr(basereg, addr):
    return basereg + addr // 65536, addr % 65536

def triple_voffs(e, pitch, permute, coloff_sgpr):
    for i in range(3):
        u = vU0 + i
        e(f"""
        v_and_b32 v{vTMPA}, 0xff, v{u}             ; row
        v_lshrrev_b32 v{vTMPB}, 8, v{u}            ; piece
        """)
        if permute:
            e(f"""
            v_bfe_u32 v{vTMPC}, v{vTMPA}, 2, 1
            v_bfe_u32 v{vT0+i}, v{vTMPA}, 3, 1
            v_and_b32 v{vTMPA}, 0x13, v{vTMPA}
            v_lshl_or_b32 v{vTMPA}, v{vTMPC}, 3, v{vTMPA}
            v_lshl_or_b32 v{vTMPA}, v{vT0+i}, 2, v{vTMPA}
            """)
        e(f"""
        v_mul_u32_u24 v{vTMPA}, {pitch}, v{vTMPA}
        v_lshl_add_u32 v{vTMPA}, v{vTMPB}, 4, v{vTMPA}
        v_add_u32 v{vT0+i}, s{coloff_sgpr}, v{vTMPA}
        """)

def triple_dma(e, rsrc, pitch, ldsbase, nks, tag, ks0=0):
    for n in range((nks + 3) // 4):
        e(f"""
        s_add_u32 s12, s3, {4*n}
        s_min_u32 s12, s12, {nks-1}
        s_mul_i32 s13, s12, 3072
        s_add_u32 s13, s13, {ldsbase}
        s_mul_i32 s12, s12, {32*pitch}
        s_mov_b32 m0, s13
        """)
        if ks0:
            e(f"s_add_u32 s12, s12, {ks0*32*pitch}")
        e("s_add_u32 s13, s13, 1024")
        e.vmem(f"buffer_load_dwordx4 v{vT0}, {R(rsrc)}, s12 offen lds", tag)
        e("s_mov_b32 m0, s13\ns_add_u32 s13, s13, 1024")
        e.vmem(f"buffer_load_dwordx4 v{vT1}, {R(rsrc)}, s12 offen lds", tag)
        e("s_mov_b32 m0, s13\ns_nop 0")
        e.vmem(f"buffer_load_dwordx4 v{vT2}, {R(rsrc)}, s12 offen lds", tag)

def poll_issue(e, tag="flag"):
    e.vmem(f"buffer_load_dwordx2 v[{vFL}:{vFL+1}], v{vFA}, {R(R_WS)}, 0 offen sc1", tag)

def poll_check(e, mask, tag="flag"):
    L = e.label("poll")
    e.wait_vm_now(tag)
    lo, hi = mask & 0xffffffff, mask >> 32
    e(f"""
    s_mov_b32 s14, 0
    {L}:
    v_cmp_ne_u64 vcc, v[{vFL}:{vFL+1}], v[{vNON}:{vNON+1}]
    s_and_b32 s12, vcc_lo, {hex(lo) if not isinstance(mask, str) else mask}
    s_cbranch_scc0 {L}_ok
    s_add_u32 s14, s14, 1
    s_cmp_gt_u32 s14, 0x8000
    s_cbranch_scc1 {L}_ok
    s_sleep 1
    buffer_load_dwordx2 v[{vFL}:{vFL+1}], v{vFA}, {R(R_WS)}, 0 offen sc1
    s_waitcnt vmcnt(0)
    s_branch {L}
    {L}_ok:
    """)

def poll_check_s(e, smask, tag="flag"):
    L = e.label("poll")
    e.wait_vm_now(tag)
    e(f"""
    s_mov_b32 s14, 0
    {L}:
    v_cmp_ne_u64 vcc, v[{vFL}:{vFL+1}], v[{vNON}:{vNON+1}]
    s_and_b32 s12, vcc_lo, s{smask}
    s_cbranch_scc0 {L}_ok
    s_add_u32 s14, s14, 1
    s_cmp_gt_u32 s14, 0x8000
    s_cbranch_scc1 {L}_ok
    s_sleep 1
    buffer_load_dwordx2 v[{vFL}:{vFL+1}], v{vFA}, {R(R_WS)}, 0 offen sc1
    s_waitcnt vmcnt(0)
    s_branch {L}
    {L}_ok:
    """)

def flag_store(e, saddr):
    e.vmem(f"buffer_store_dwordx2 v[{vNON}:{vNON+1}], v19, {R(R_WS)}, s{saddr} offen sc1", "flagst")

def xq_reduce(e, regs, t):
    for r in regs:
        e(f"""
        v_mov_b32 v{t}, v{r}
        s_nop 1
        v_permlane16_swap_b32 v{r}, v{t}
        s_nop 1
        v_add_f32 v{r}, v{r}, v{t}
        v_mov_b32 v{t}, v{r}
        s_nop 1
        v_permlane32_swap_b32 v{r}, v{t}
        s_nop 1
        v_add_f32 v{r}, v{r}, v{t}
        """)

def stats_finish(e, vsum, vsq, vm, vsd, t0):
    inv = hex(f32bits(1.0 / 576.0))
    e(f"""
    v_mul_f32 v{vm}, {inv}, v{vsum}
    v_mul_f32 v{t0}, {inv}, v{vsq}
    v_fma_f32 v{t0}, -v{vm}, v{vm}, v{t0}
    v_max_f32 v{t0}, 0, v{t0}
    v_cvt_pk_bf16_f32 v{t0}, v{t0}, v{vm}
    v_and_b32 v{vm}, 0xffff0000, v{t0}
    v_lshlrev_b32 v{t0}, 16, v{t0}
    v_add_f32 v{t0}, {hex(f32bits(1e-5))}, v{t0}
    v_cvt_pk_bf16_f32 v{t0}, v{t0}, v{t0}
    v_lshlrev_b32 v{t0}, 16, v{t0}
    v_sqrt_f32 v{t0}, v{t0}
    s_nop 0
    v_cvt_pk_bf16_f32 v{t0}, v{t0}, v{t0}
    v_lshlrev_b32 v{vsd}, 16, v{t0}
    """)

def gelu_chain(x, t, a0, a1, sd):
    return [
        f"v_mul_f32 v{t}, v{x}, v{x}",
        f"v_fma_f32 v{t}, v{t}, v{a1}, v{a0}",
        f"v_mul_f32 v{t}, v{x}, v{t}",
        f"v_exp_f32 v{t}, v{t}",
        f"v_fma_f32 v{t}, v{t}, v{sd}, v{sd}",
        f"v_rcp_f32 v{t}, v{t}",
        f"v_mul_f32 v{x}, v{x}, v{t}",
    ]

def interleave(chains):
    out = []
    n = max(len(c) for c in chains)
    for k in range(n):
        for c in chains:
            if k < len(c): out.append(c[k])
    return out

def cost(ins):
    if ins.startswith(("v_exp", "v_rcp", "v_rsq", "v_sqrt")): return 2
    return 1

def mfma_stream(e, items, fillers, dist=4, batches=None):
    n = len(items)
    first = []
    nm = 0
    for it in items:
        first.append(nm); nm += len(it[1])
    first.append(nm)
    slots = [[] for _ in range(nm)]
    allb = [(0, n, fillers)] + list(batches or [])
    for (s0, s1, fl) in allb:
        if not fl: continue
        m0, m1 = first[s0], first[min(s1, n)]
        tot = sum(cost(f) if isinstance(f, str) else 2 for f in fl)
        acc = 0.0
        for f in fl:
            pos = m0 + int(acc / tot * (m1 - m0))
            slots[min(pos, m1 - 1)].append(f)
            acc += cost(f) if isinstance(f, str) else 2
    for i in range(min(dist, n)):
        for r in items[i][0]: e(r)
    out = []
    for i in range(min(dist, n)):
        out += [i] * len(items[i][0])
    waited = -1
    def need(i):
        nonlocal out, waited
        if i <= waited or i >= n: return
        cnt = sum(1 for x in out if x > i)
        e(f"s_waitcnt lgkmcnt({cnt})")
        out = [x for x in out if x > i]
        waited = i
    need(0)
    mi_g = 0
    for i, (rd, ms, pre) in enumerate(items):
        need(i)
        if pre:
            pre()
        pend = list(items[i + dist][0]) if i + dist < n else []
        for mi, m_ in enumerate(ms):
            e(m_)
            k = -(-len(pend) // (len(ms) - mi))
            for _ in range(k):
                e(pend.pop(0)); out.append(i + dist)
            if mi == len(ms) - 1 and (i % 2 == 1):
                need(min(i + 2, n - 1))
            for f in slots[mi_g]:
                if isinstance(f, str): e(f)
                else: f()
            mi_g += 1

def tr_reads(frag, basereg, addr, toff):
    v0_, o0 = lds_addr(basereg, addr)
    v1_, o1 = lds_addr(basereg, addr + toff)
    return [f"ds_read_b64_tr_b16 v[{frag}:{frag+1}], v{v0_} offset:{o0}",
            f"ds_read_b64_tr_b16 v[{frag+2}:{frag+3}], v{v1_} offset:{o1}"]

def mf(acc, a, b, first):
    c = "0" if first else f"v[{acc}:{acc+3}]"
    return f"v_mfma_f32_16x16x32_bf16 v[{acc}:{acc+3}], {a}, {b}, {c}"

def ab_loop(e, ldsbase, prewaits=None):
    items = []
    cnt = 0
    for s in range(18):
        for t in range(3):
            f = AF + 4 * (cnt % 8); cnt += 1
            rd = tr_reads(f, vTR, ldsbase + s * 3072 + t * 32, 768)
            pre = prewaits.get(s) if (prewaits and t == 0) else None
            items.append((rd, [mf(ACC + 4 * t, f"v[{f}:{f+3}]", f"v[{XF+4*s}:{XF+4*s+3}]", s == 0)], pre))
    mfma_stream(e, items, [], dist=6)

def gen():
    e = G()
    e.lines.append(kstart(NAME))
    e(f"""
    s_cmp_ge_u32 s2, 256
    s_cbranch_scc1 L_end
    """)
    e.stamp(0)
    e(f"""
    s_load_dwordx16 s[16:31], s[0:1], 0
    s_memrealtime s[{sNON}:{sNON+1}]
    s_getpc_b64 s[96:97]
    v_lshrrev_b32 v1, 6, v0
    v_and_b32 v0, 63, v0
    s_nop 0
    v_readfirstlane_b32 s3, v1
    v_lshrrev_b32 v{vQ}, 4, v0
    v_and_b32 v{vM}, 15, v0
    v_mov_b32 v{vZERO}, 0
    v_lshlrev_b32 v{vL16}, 4, v0
    v_mov_b32 v{vONE}, 0x3f803f80
    s_and_b32 s{sXCD}, s2, 7
    s_lshr_b32 s{sIDX}, s2, 3
    s_and_b32 s{sSIG}, s{sIDX}, 3
    s_lshr_b32 s{sRB}, s{sIDX}, 2
    s_lshl_b32 s{sRG}, s{sXCD}, 1
    s_cmp_ge_u32 s{sIDX}, 12
    s_cselect_b32 s12, 1, 0
    s_cselect_b32 s13, 12, 0
    s_add_u32 s{sRG}, s{sRG}, s12
    s_sub_u32 s{sJ}, s{sIDX}, s13
    v_lshlrev_b32 v{vTMPA}, 7, v0
    s_lshl_b32 s12, s3, 13
    v_add_u32 v{vTMPA}, s12, v{vTMPA}
    v_add_u32 v{vTMPB}, 0x8000, v{vTMPA}
    v_min_u32 v{vTMPA}, CODE_SIZE, v{vTMPA}
    v_min_u32 v{vTMPB}, CODE_SIZE, v{vTMPB}
    """)
    e.vmem(f"global_load_dword v{TMP+47}, v{vTMPA}, s[96:97]", "misc")
    e.vmem(f"global_load_dword v{TMP+46}, v{vTMPB}, s[96:97]", "misc")
    e(f"""
    v_cmp_eq_u32 vcc, 0, v0
    v_mov_b32 v19, 0x7ff00000
    s_nop 1
    v_cndmask_b32 v19, v19, v{vZERO}, vcc
    """)
    for i in range(3):
        e(f"""
        v_add_u32 v{vTMPA}, {64*i}, v0
        v_mul_u32_u24 v{vTMPB}, 171, v{vTMPA}
        v_lshrrev_b32 v{vTMPB}, 10, v{vTMPB}           ; row
        v_mul_u32_u24 v{vTMPC}, 6, v{vTMPB}
        v_sub_u32 v{vTMPA}, v{vTMPA}, v{vTMPC}         ; slot
        v_lshlrev_b32 v{vTMPC}, 2, v{vTMPA}
        v_mov_b32 v{vU0+i}, 0x543120
        v_lshrrev_b32 v{vTMPC}, v{vTMPC}, v{vU0+i}
        v_and_b32 v{vTMPC}, 15, v{vTMPC}               ; piece
        v_lshl_or_b32 v{vU0+i}, v{vTMPC}, 8, v{vTMPB}
        """)
    e(f"""
    v_lshrrev_b32 v{vTMPA}, 5, v0
    v_lshlrev_b32 v{vTMPA}, 4, v{vTMPA}
    v_bfe_u32 v{vTMPB}, v0, 4, 1
    v_lshl_add_u32 v{vTMPA}, v{vTMPB}, 2, v{vTMPA}
    v_bfe_u32 v{vTMPB}, v0, 2, 2
    v_add_u32 v{vTMPA}, v{vTMPA}, v{vTMPB}             ; row
    v_and_b32 v{vTMPB}, 3, v0
    v_lshlrev_b32 v{vTMPB}, 3, v{vTMPB}                ; c*8
    v_mul_u32_u24 v{vTR}, 96, v{vTMPA}
    v_add_u32 v{vTR}, v{vTR}, v{vTMPB}
    v_add_u32 v{vTR+1}, 0x10000, v{vTR}
    v_add_u32 v{vTR+2}, 0x20000, v{vTR}
    v_mul_u32_u24 v{vTR4}, 288, v{vTMPA}
    v_add_u32 v{vTR4}, v{vTR4}, v{vTMPB}
    v_add_u32 v{vTR4+1}, 0x10000, v{vTR4}
    v_add_u32 v{vTR4+2}, 0x20000, v{vTR4}
    s_waitcnt lgkmcnt(0)
    """)
    srd(e, R_X, S_X, 1024 * 1152)
    srd(e, R_W1, S_W1, 576 * 1152)
    srd(e, R_W2, S_W2, 576 * 1152)
    srd(e, R_W3, S_W3, 576 * 9216)
    srd(e, R_W4, S_W4, 4608 * 1152)
    srd(e, R_WS, S_WS, 0x10000000 if STAMPS else WSEND)
    srd(e, R_OUT, S_OUT, 1024 * 1152)
    srd(e, R_DBG, S_DBG, 256)
    e.stamp(1)
    e(f"""
    s_or_b32 s12, s2, s3
    s_cmp_lg_u32 s12, 0
    s_cbranch_scc1 L_nononce
    s_or_b32 s{sNON+1}, s{sNON+1}, 0x40000000
    v_mov_b32 v{vNON}, s{sNON}
    v_mov_b32 v{vNON+1}, s{sNON+1}
    buffer_store_dwordx2 v[{vNON}:{vNON+1}], v19, {R(R_DBG)}, 0 offen sc1
    L_nononce:
    s_lshl_b32 s98, s{sXCD}, 2
    s_add_u32 s98, s98, s{sSIG}        ; fb
    s_mul_i32 s99, s98, 288
    s_cmp_ge_u32 s{sIDX}, 24
    s_cbranch_scc1 L_idle
    """)
    e.vm = ["misc", "misc"]
    e(f"""
    s_lshl_b32 s12, s{sRG}, 6
    s_lshl_b32 s13, s3, 4
    s_add_u32 s12, s12, s13
    v_add_u32 v{vTMPA}, s12, v{vM}
    v_mul_u32_u24 v{TMP}, 1152, v{vTMPA}
    v_lshl_add_u32 v{vTMPA}, v{vQ}, 4, v{TMP}
    """)
    for s in range(18):
        e.vmem(f"buffer_load_dwordx4 v[{XF+4*s}:{XF+4*s+3}], v{vTMPA}, {R(R_X)}, 0 offen offset:{64*s}", f"x{s}")
    e(f"s_mul_i32 s15, s{sJ}, 96")
    triple_voffs(e, 1152, True, 15)
    triple_dma(e, R_W1, 1152, R0, 18, "w1")
    e.vmem(f"buffer_load_dwordx2 v[{vNON}:{vNON+1}], v{vZERO}, {R(R_DBG)}, 0 offen sc1", "nonce")
    e(f"""
    v_lshrrev_b32 v{vTMPA}, 1, v{vQ}
    v_lshlrev_b32 v{vTMPA}, 5, v{vTMPA}
    v_and_b32 v{vTMPB}, 1, v{vQ}
    v_lshl_add_u32 v{vTMPA}, v{vTMPB}, 3, v{vTMPA}
    v_add_u32 v{vTMPA}, v{vTMPA}, v{TMP}
    v_lshl_add_u32 v{vTMPB}, v{vQ}, 3, v{TMP}
    """)
    XR = TMP + 40
    e.vmem(f"buffer_load_dwordx2 v[{XR}:{XR+1}], v{vTMPA}, {R(R_X)}, s15 offen", "xr")
    e.vmem(f"buffer_load_dwordx2 v[{XR+2}:{XR+3}], v{vTMPA}, {R(R_X)}, s15 offen offset:16", "xr")
    e.vmem(f"buffer_load_dwordx2 v[{XR+4}:{XR+5}], v{vTMPB}, {R(R_X)}, s15 offen offset:64", "xr")
    triple_voffs(e, 1152, False, 15)
    triple_dma(e, R_W2, 1152, R1, 18, "w2")
    e.stamp(2)
    S0, S1 = TMP + 2, TMP + 3
    e(f"v_mov_b32 v{S0}, 0\nv_mov_b32 v{S1}, 0")
    for s in range(18):
        e.wait_vm_now(f"x{s}")
        for k in range(4):
            e(f"v_dot2_f32_bf16 v{S0}, v{XF+4*s+k}, v{vONE}, v{S0}")
        for k in range(4):
            e(f"v_dot2_f32_bf16 v{S1}, v{XF+4*s+k}, v{XF+4*s+k}, v{S1}")
    e("s_nop 2")
    xq_reduce(e, [S0, S1], TMP + 4)
    stats_finish(e, S0, S1, TMP + 4, TMP + 5, TMP + 6)
    e(f"""
    v_rcp_f32 v{TMP+6}, v{TMP+5}
    s_nop 0
    v_mov_b32 v{TMP+7}, v{TMP+6}
    v_mul_f32 v{TMP+8}, -v{TMP+4}, v{TMP+6}
    v_mov_b32 v{TMP+9}, v{TMP+8}
    """)
    for r in range(72):
        t = TMP + 10 + 2 * (r % 4)
        e(f"""
        v_lshlrev_b32 v{t}, 16, v{XF+r}
        v_and_b32 v{t+1}, 0xffff0000, v{XF+r}
        v_pk_fma_f32 v[{t}:{t+1}], v[{t}:{t+1}], v[{TMP+6}:{TMP+7}], v[{TMP+8}:{TMP+9}]
        v_cvt_pk_bf16_f32 v{XF+r}, v{t}, v{t+1}
        """)
    e.stamp(3)
    e(f"s_add_u32 s15, s99, 192")
    triple_voffs(e, 9216, False, 15)
    e.wait_vm_now("w1")
    triple_dma(e, R_W3, 9216, R2, 17, "w3c")
    e("s_barrier")
    e.stamp(4)
    ab_loop(e, R0)
    e.stamp(5)
    e(f"""
    v_mov_b32 v{TMP+4}, {hex(f32bits(GC0))}
    v_mov_b32 v{TMP+5}, {hex(f32bits(GC1))}
    v_mov_b32 v{TMP+6}, 1.0
    s_mul_i32 s12, s{sJ}, 43
    s_lshr_b32 s12, s12, 7              ; group
    s_and_b32 s13, s12, 1
    s_lshr_b32 s12, s12, 1
    s_add_u32 s12, s12, 1
    s_sub_u32 s14, 0, s12
    s_cmp_eq_u32 s13, 1
    s_cselect_b32 s12, s14, s12         ; shift
    s_and_b32 s13, s3, 1
    s_lshl_b32 s13, s13, 4
    s_add_u32 s12, s12, s13
    v_add_u32 v{TMP+7}, s12, v{vM}
    v_cmp_gt_u32 s[100:101], 32, v{TMP+7}
    v_bfe_u32 v{TMP+8}, v{TMP+7}, 4, 1
    v_and_b32 v{TMP+7}, 15, v{TMP+7}
    """)
    for p in range(6):
        x0, x1 = ACC + 2 * p, ACC + 2 * p + 1
        e(f"""
        v_cvt_pk_bf16_f32 v{x1}, v{x0}, v{x1}
        v_lshlrev_b32 v{x0}, 16, v{x1}
        v_and_b32 v{x1}, 0xffff0000, v{x1}
        """)
    for ins in interleave([gelu_chain(ACC + i, TMP + 12 + i, TMP + 4, TMP + 5, TMP + 6) for i in range(12)]):
        e(ins)
    OUTR = TMP + 24
    for p in range(6):
        e(f"v_cvt_pk_bf16_f32 v{OUTR+p}, v{ACC+2*p}, v{ACC+2*p+1}")
    for p in range(6):
        e(f"v_cndmask_b32 v{OUTR+p}, 0, v{OUTR+p}, s[100:101]")

    def ab_store(buf, vst, vpos):
        e(f"""
        s_lshl_b32 s12, s{sRG}, 2
        s_and_b32 s13, s3, 2
        s_add_u32 s12, s12, s13
        s_mul_i32 s12, s12, 18432
        s_mul_i32 s13, s{sJ}, 1536
        s_add_u32 s12, s12, s13
        s_add_u32 s12, s12, {buf}
        v_mul_u32_u24 v{vTMPA}, 18432, v{vst}
        v_lshl_add_u32 v{vTMPA}, v{vpos}, 4, v{vTMPA}
        v_lshl_add_u32 v{vTMPB}, v{vQ}, 8, v{vTMPA}
        v_and_b32 v{vTMPC}, 1, v{vQ}
        v_lshl_add_u32 v{vTMPA}, v{vTMPC}, 8, v{vTMPA}
        v_lshrrev_b32 v{vTMPC}, 1, v{vQ}
        v_lshl_add_u32 v{vTMPA}, v{vTMPC}, 3, v{vTMPA}
        """)
        e.vmem(f"buffer_store_dwordx4 v[{OUTR}:{OUTR+3}], v{vTMPB}, {R(R_WS)}, s12 offen sc1", "st")
        e.vmem(f"buffer_store_dwordx2 v[{OUTR+4}:{OUTR+5}], v{vTMPA}, {R(R_WS)}, s12 offen offset:1024 sc1", "st")
    ab_store(HBUF, TMP + 8, TMP + 7)
    e.stamp(6)
    def nonce_check():
        L = e.label("non")
        e(f"""
        s_mov_b32 s14, 0
        {L}:
        v_cmp_ne_u32 vcc, 0, v{vNON+1}
        s_cbranch_vccnz {L}_ok
        s_add_u32 s14, s14, 1
        s_cmp_gt_u32 s14, 0x8000
        s_cbranch_scc1 {L}_ok
        s_sleep 1
        buffer_load_dwordx2 v[{vNON}:{vNON+1}], v{vZERO}, {R(R_DBG)}, 0 offen sc1
        s_waitcnt vmcnt(0)
        s_branch {L}
        {L}_ok:
        """)
    e.wait_all()
    nonce_check()
    e(f"""
    s_barrier
    s_lshl_b32 s12, s{sRG}, 7
    s_lshl_b32 s13, s{sJ}, 3
    s_add_u32 s13, s13, s12
    s_add_u32 s13, s13, {FH}
    s_add_u32 s12, s12, {FH}
    v_lshlrev_b32 v{vFA}, 3, v{vM}
    v_add_u32 v{vFA}, s12, v{vFA}
    s_cmp_lg_u32 s3, 0
    s_cbranch_scc1 L_nofh
    buffer_store_dwordx2 v[{vNON}:{vNON+1}], v19, {R(R_WS)}, s13 offen sc1
    L_nofh:
    """)
    e.vm = ["misc"]
    e.stamp(7)
    e(f"s_mov_b32 s15, s99")
    triple_voffs(e, 9216, False, 15)
    triple_dma(e, R_W3, 9216, R0, 18, "w3a")
    poll_issue(e)
    poll_check(e, 0xfff)
    e.stamp(8)
    e(f"""
    s_lshl_b32 s12, s{sRG}, 2
    s_add_u32 s12, s12, s3
    s_mul_i32 s12, s12, 18432
    s_add_u32 s12, s12, {HBUF}
    """)
    for s in range(18):
        if s and s % 4 == 0:
            e("s_add_u32 s12, s12, 4096")
        e.vmem(f"buffer_load_dwordx4 v[{XF+4*s}:{XF+4*s+3}], v{vL16}, {R(R_WS)}, s12 offen offset:{1024*(s%4)} sc1", f"h{s}")
    ab_loop(e, R1, {s: (lambda s=s: e.wait_vm_now(f"h{s}")) for s in range(18)})
    e.stamp(9)
    e("s_nop 7")
    for p in range(6):
        x0, x1 = ACC + 2 * p, ACC + 2 * p + 1
        e(f"""
        v_cvt_pk_bf16_f32 v{x1}, v{x0}, v{x1}
        v_lshlrev_b32 v{x0}, 16, v{x1}
        v_and_b32 v{x1}, 0xffff0000, v{x1}
        v_lshlrev_b32 v{TMP+4}, 16, v{XR+p}
        v_and_b32 v{TMP+5}, 0xffff0000, v{XR+p}
        v_add_f32 v{x0}, v{x0}, v{TMP+4}
        v_add_f32 v{x1}, v{x1}, v{TMP+5}
        v_cvt_pk_bf16_f32 v{OUTR+p}, v{x0}, v{x1}
        """)
    e(f"""
    s_and_b32 s13, s3, 1
    v_mov_b32 v{TMP+8}, s13
    """)
    ab_store(X1BUF, TMP + 8, vM)
    e(f"v_mov_b32 v{S0}, 0\nv_mov_b32 v{S1}, 0")
    for p in range(6):
        e(f"v_dot2_f32_bf16 v{S0}, v{OUTR+p}, v{vONE}, v{S0}")
    for p in range(6):
        e(f"v_dot2_f32_bf16 v{S1}, v{OUTR+p}, v{OUTR+p}, v{S1}")
    e("s_nop 2")
    xq_reduce(e, [S0, S1], TMP + 4)
    e(f"""
    s_mul_i32 s12, s{sJ}, 43
    s_lshr_b32 s12, s12, 7
    s_lshl_b32 s12, s12, 3
    s_lshl_b32 s13, s{sJ}, 3
    s_add_u32 s12, s12, s13             ; j*8 + (j/3)*8
    s_lshl_b32 s13, s{sRG}, 6
    s_lshl_b32 s14, s3, 4
    s_add_u32 s13, s13, s14
    s_lshl_b32 s13, s13, 7
    s_add_u32 s12, s12, s13
    s_add_u32 s12, s12, {STBUF}
    v_lshlrev_b32 v{vTMPA}, 7, v0
    v_cmp_gt_u32 vcc, 16, v0
    v_mov_b32 v{vTMPB}, 0x7ff00000
    s_nop 1
    v_cndmask_b32 v{vTMPA}, v{vTMPB}, v{vTMPA}, vcc
    """)
    e.vmem(f"buffer_store_dwordx2 v[{S0}:{S1}], v{vTMPA}, {R(R_WS)}, s12 offen sc1", "st")
    e.stamp(10)
    e.wait_all()
    e(f"""
    s_barrier
    s_lshl_b32 s12, s{sRG}, 7
    s_lshl_b32 s13, s{sJ}, 3
    s_add_u32 s13, s13, s12
    s_add_u32 s13, s13, {FX}
    s_cmp_lg_u32 s3, 0
    s_cbranch_scc1 L_nofx
    buffer_store_dwordx2 v[{vNON}:{vNON+1}], v19, {R(R_WS)}, s13 offen sc1
    L_nofx:
    s_add_u32 s15, s99, 96
    """)
    e.vm = ["misc"]
    triple_voffs(e, 9216, False, 15)
    triple_dma(e, R_W3, 9216, R1, 18, "w3b")
    e("s_branch L_cstart")
    e("L_idle:")
    e.vm = ["misc", "misc"]
    e(f"""
    v_lshlrev_b32 v{vTMPA}, 7, v0
    s_and_b32 s12, s{sIDX}, 3
    s_lshl_b32 s12, s12, 2
    s_add_u32 s12, s12, s3
    s_lshl_b32 s12, s12, 13             ; (wg*4+w)*8192
    s_cmp_ge_u32 s{sIDX}, 28
    s_cbranch_scc1 L_idle_cs
    """)
    for i in range(6):
        e(f"buffer_load_dword v{TMP+i}, v{vTMPA}, {R(R_W1)}, s12 offen\ns_add_u32 s12, s12, 0x20000")
    e(f"s_sub_u32 s12, s12, {6*0x20000}")
    for i in range(6):
        e(f"buffer_load_dword v{TMP+6+i}, v{vTMPA}, {R(R_W2)}, s12 offen\ns_add_u32 s12, s12, 0x20000")
    e(f"""
    s_branch L_idle2
    L_idle_cs:
    s_add_u32 s15, s99, 192
    """)
    triple_voffs(e, 9216, False, 15)
    triple_dma(e, R_W3, 9216, R0, 1, "w", ks0=17)
    e("s_waitcnt vmcnt(0)\ns_barrier")
    for t in range(3):
        for r in tr_reads(XF + 4 * t, vTR, R0 + t * 32, 768): e(r)
    e("s_waitcnt lgkmcnt(0)\ns_barrier")
    e("L_idle2:")
    e.vm = ["misc"] * 14
    e.vmem(f"buffer_load_dwordx2 v[{vNON}:{vNON+1}], v{vZERO}, {R(R_DBG)}, 0 offen sc1", "nonce")
    for phi, (reg, nks) in enumerate([(R0, 18), (R1, 18), (R2, 17)]):
        e(f"s_add_u32 s15, s99, {96*phi}")
        triple_voffs(e, 9216, False, 15)
        triple_dma(e, R_W3, 9216, reg, nks, "w3")
    e.wait_all()
    e(f"""
    v_lshlrev_b32 v{vTMPA}, 7, v0
    s_sub_u32 s12, s{sIDX}, 24
    s_lshl_b32 s12, s12, 2
    s_add_u32 s12, s12, s3
    s_lshl_b32 s12, s12, 13
    s_mul_i32 s13, s{sXCD}, 663552
    s_add_u32 s12, s12, s13
    """)
    for i in range(3):
        e.vmem(f"buffer_load_dword v{TMP+i}, v{vTMPA}, {R(R_W4)}, s12 offen", "misc")
        e("s_add_u32 s12, s12, 0x40000")
    nonce_check()
    e(f"""
    s_barrier
    s_cmp_lt_u32 s{sIDX}, 28
    s_cbranch_scc1 L_cstart
    s_cmp_eq_u32 s3, 3
    s_cbranch_scc1 L_cs_skip
    s_mul_i32 s12, s3, 55296
    v_add_u32 v{TMP+8}, s12, v{vTR}
    v_mov_b32 v{TMP+4}, v{vONE}
    v_mov_b32 v{TMP+5}, v{vONE}
    v_mov_b32 v{TMP+6}, v{vONE}
    v_mov_b32 v{TMP+7}, v{vONE}
    """)
    e(f"""
    s_cmp_eq_u32 s3, 2
    s_cbranch_scc1 L_cs_have
    """)
    for t in range(3):
        e(f"ds_read_b64_tr_b16 v[{XF+4*t}:{XF+4*t+1}], v{TMP+8} offset:{17*3072 + t*32}")
        e(f"ds_read_b64_tr_b16 v[{XF+4*t+2}:{XF+4*t+3}], v{TMP+8} offset:{17*3072 + t*32 + 768}")
    e("L_cs_have:\ns_waitcnt lgkmcnt(0)")
    ones = f"v[{TMP+4}:{TMP+7}]"
    for t in range(3):
        e(mf(ACC + 4 * t, ones, f"v[{XF+4*t}:{XF+4*t+3}]", True))
    items = []
    cnt = 0
    for s in range(17):
        for t in range(3):
            f = AF + 4 * (cnt % 8); cnt += 1
            rd = [f"ds_read_b64_tr_b16 v[{f}:{f+1}], v{TMP+8} offset:{s*3072 + t*32}",
                  f"ds_read_b64_tr_b16 v[{f+2}:{f+3}], v{TMP+8} offset:{s*3072 + t*32 + 768}"]
            items.append((rd, [mf(ACC + 4 * t, ones, f"v[{f}:{f+3}]", False)], None))
    mfma_stream(e, items, [], dist=6)
    e(f"""
    s_nop 7
    s_lshl_b32 s12, s98, 10
    s_mul_i32 s13, s3, 192
    s_add_u32 s12, s12, s13
    s_add_u32 s12, s12, {CSBUF}
    v_lshlrev_b32 v{vTMPA}, 2, v0
    v_cmp_gt_u32 vcc, 16, v0
    v_mov_b32 v{vTMPB}, 0x7ff00000
    s_nop 1
    v_cndmask_b32 v{vTMPA}, v{vTMPB}, v{vTMPA}, vcc
    """)
    for t in range(3):
        a = ACC + 4 * t
        e(f"""
        v_and_b32 v{a+1}, 0xffff0000, v{a}
        v_sub_f32 v{a+2}, v{a}, v{a+1}
        v_cvt_pk_bf16_f32 v{a+1}, v{a+1}, v{a+2}
        buffer_store_dword v{a+1}, v{vTMPA}, {R(R_WS)}, s12 offen offset:{64*t} sc1
        """)
    e(f"""
    s_waitcnt vmcnt(0)
    L_cs_skip:
    s_barrier
    s_lshl_b32 s13, s98, 6
    s_add_u32 s13, s13, {FCS}
    s_cmp_lg_u32 s3, 0
    s_cbranch_scc1 L_cstart
    buffer_store_dwordx2 v[{vNON}:{vNON+1}], v19, {R(R_WS)}, s13 offen sc1
    """)
    e("L_cstart:")
    e.vm = ["misc"] + ["w3b"] * 15
    e.stamp(11)
    def w4_voff(dst, isrc, keep_row=None):
        e(f"""
        v_add_u32 v{vTMPA}, {isrc}, v0
        v_mul_u32_u24 v{vTMPB}, 3641, v{vTMPA}
        v_lshrrev_b32 v{vTMPB}, 16, v{vTMPB}           ; row
        v_mul_u32_u24 v{vTMPC}, 18, v{vTMPB}
        v_sub_u32 v{vTMPA}, v{vTMPA}, v{vTMPC}         ; slot
        v_lshrrev_b32 v{vTMPC}, 1, v{vTMPA}            ; tau
        v_cmp_eq_u32 vcc, 0, v{vTMPC}
        v_add_u32 v{vTMPC}, s{sXCD}, v{vTMPC}
        v_and_b32 v{vTMPC}, 7, v{vTMPC}
        v_cndmask_b32 v{vTMPC}, v{vTMPC}, 8, vcc       ; T
        v_and_b32 v{vTMPA}, 1, v{vTMPA}
        v_lshl_add_u32 v{vTMPA}, v{vTMPC}, 1, v{vTMPA}
        v_mul_u32_u24 v{dst}, 1152, v{vTMPB}
        v_lshl_add_u32 v{dst}, v{vTMPA}, 4, v{dst}
        """)
        if keep_row is not None:
            e(f"""
            v_cmp_lt_u32 vcc, 15, v{vTMPB}
            v_add_u32 v{keep_row}, {96*1152}, v{dst}
            s_nop 0
            v_cndmask_b32 v{keep_row}, v{dst}, v{keep_row}, vcc
            """)
    e("s_lshl_b32 s12, s3, 6\ns_add_u32 s13, s12, 256")
    w4_voff(vW4A, "s12")
    w4_voff(vW4B, "s13", vW4Bb)
    w4_voff(vW4C, "512")
    e(f"""
    s_mul_i32 s100, s{sXCD}, 663552
    s_mul_i32 s12, s{sSIG}, 288
    s_add_u32 s100, s100, s12
    s_lshl_b32 s12, s{sRB}, 1
    s_lshr_b32 s13, s3, 1
    s_add_u32 s12, s12, s13
    s_lshl_b32 s12, s12, 7
    s_add_u32 s12, s12, {FX}
    v_lshlrev_b32 v{vFA}, 3, v{vM}
    v_add_u32 v{vFA}, s12, v{vFA}
    s_lshl_b32 s13, s98, 6
    s_add_u32 s13, s13, {FCS}
    v_mov_b32 v{vTMPA}, s13
    v_cmp_eq_u32 vcc, 12, v0
    s_nop 1
    v_cndmask_b32 v{vFA}, v{vFA}, v{vTMPA}, vcc
    """)
    poll_issue(e)
    poll_check(e, 0x1fff)
    e.vm = []
    e.stamp(12)
    e(f"""
    s_lshl_b32 s12, s{sRB}, 3
    s_lshl_b32 s13, s3, 1
    s_add_u32 s101, s12, s13            ; st0
    s_mul_i32 s12, s101, 18432
    s_add_u32 s12, s12, {X1BUF}
    s_add_u32 s13, s12, 18432
    """)
    for s in range(18):
        if s and s % 4 == 0:
            e("s_add_u32 s12, s12, 4096\ns_add_u32 s13, s13, 4096")
        for u in range(2):
            e.vmem(f"buffer_load_dwordx4 a[{72*u+4*s}:{72*u+4*s+3}], v{vL16}, {R(R_WS)}, s{12+u} offen offset:{1024*(s%4)} sc1", f"x1{s}")
    SL = XF
    CS = XF + 16
    e(f"""
    s_lshl_b32 s12, s101, 11
    s_add_u32 s12, s12, {STBUF}
    v_lshlrev_b32 v{vTMPA}, 7, v{vM}
    v_lshl_add_u32 v{vTMPA}, v{vQ}, 5, v{vTMPA}
    s_lshl_b32 s13, s98, 10
    s_add_u32 s13, s13, {CSBUF}
    v_lshlrev_b32 v{vTMPB}, 2, v0
    v_cmp_gt_u32 vcc, 16, v0
    v_mov_b32 v{vTMPC}, 0x7ff00000
    s_nop 1
    v_cndmask_b32 v{vTMPB}, v{vTMPC}, v{vTMPB}, vcc
    """)
    for u in range(2):
        e.vmem(f"buffer_load_dwordx4 v[{SL+8*u}:{SL+8*u+3}], v{vTMPA}, {R(R_WS)}, s12 offen offset:{2048*u} sc1", "stat")
        e.vmem(f"buffer_load_dwordx2 v[{SL+8*u+4}:{SL+8*u+5}], v{vTMPA}, {R(R_WS)}, s12 offen offset:{2048*u+16} sc1", "stat")
    for t in range(9):
        e.vmem(f"buffer_load_dword v{CS+t}, v{vTMPB}, {R(R_WS)}, s13 offen offset:{64*t} sc1", "stat")
    e("s_barrier")
    GK = XF + 28; RBF = XF + 36; RA = XF + 44
    def stats_setup():
        e.wait_vm_now("stat")
        for u in range(2):
            b = SL + 8 * u
            e(f"""
            v_add_f32 v{b}, v{b}, v{b+2}
            v_add_f32 v{b+1}, v{b+1}, v{b+3}
            v_add_f32 v{b}, v{b}, v{b+4}
            v_add_f32 v{b+1}, v{b+1}, v{b+5}
            """)
            xq_reduce(e, [b, b + 1], b + 2)
            stats_finish(e, b, b + 1, b + 2, GK + 4 * u + 2, b + 3)
            e(f"""
            v_rcp_f32 v{b+3}, v{GK+4*u+2}
            v_cvt_pk_bf16_f32 v{RBF+4*u}, -v{b+2}, -v{b+2}
            v_mov_b32 v{RBF+4*u+1}, 0
            v_mov_b32 v{RBF+4*u+2}, 0
            v_mov_b32 v{RBF+4*u+3}, 0
            v_mul_f32 v{GK+4*u}, {hex(f32bits(GC0))}, v{b+3}
            v_mul_f32 v{b+4}, v{b+3}, v{b+3}
            v_mul_f32 v{b+4}, v{b+4}, v{b+3}
            v_mul_f32 v{GK+4*u+1}, {hex(f32bits(GC1))}, v{b+4}
            """)
        for r in range(8):
            e(f"v_mov_b32 v{RA+r}, 0")
    vGA, vGB = XF + 52, XF + 53
    e(f"""
    s_lshl_b32 s12, s101, 3
    s_add_u32 s12, s12, s{sXCD}
    s_mul_i32 s96, s12, 18432
    s_add_u32 s96, s96, {GBUF}
    s_mul_i32 s12, s{sSIG}, 1536
    s_add_u32 s97, s96, s12
    v_mov_b32 v{vGA}, v{vL16}
    v_and_b32 v{vTMPA}, 1, v{vQ}
    v_lshlrev_b32 v{vGB}, 8, v{vTMPA}
    v_lshl_add_u32 v{vGB}, v{vM}, 4, v{vGB}
    v_lshrrev_b32 v{vTMPA}, 1, v{vQ}
    v_lshl_add_u32 v{vGB}, v{vTMPA}, 3, v{vGB}
    s_lshl_b32 s12, s{sRB}, 3
    s_add_u32 s12, s12, s{sXCD}
    s_lshl_b32 s12, s12, 2
    s_add_u32 s12, s12, s3
    s_lshl_b32 s12, s12, 7
    s_add_u32 s{sRG}, s12, {FG}
    s_lshl_b32 s12, s{sSIG}, 3
    s_add_u32 s{sJ}, s{sRG}, s12
    """)
    sFGB, sFGO = sRG, sJ
    CREG = [R0, R1, R2]
    W4ADDR = {}
    for k in range(5): W4ADDR[k] = R0 + 3072 + 9216 * k
    for k in range(5, 11): W4ADDR[k] = R1 + 9216 * (k - 5)
    for k in range(11, 16): W4ADDR[k] = R2 + 9216 * (k - 11)
    for k in range(16, 18): W4ADDR[k] = R0 + 3072 + 9216 * (k - 16)

    def w4_rowbase(gam):
        phi, r = divmod(gam, 12)
        sg, i = divmod(r, 3)
        return 144 * sg + 48 * phi + 16 * i
    def w4_dma_ops(ks_list, tag):
        ops = []
        for k in ks_list:
            rb0 = w4_rowbase(2 * k); rb1 = w4_rowbase(2 * k + 1)
            typeb = (rb1 != rb0 + 16)
            if typeb: assert rb1 == rb0 + 16 + 96
            def opA(k=k, rb0=rb0):
                e(f"""
                s_lshl_b32 s13, s3, 10
                s_add_u32 s13, s13, {W4ADDR[k]}
                s_mov_b32 m0, s13
                s_add_u32 s12, s100, {rb0*1152}
                """)
                e.vmem(f"buffer_load_dwordx4 v{vW4A}, {R(R_W4)}, s12 offen lds", tag)
            def opB(k=k, typeb=typeb):
                e(f"""
                s_add_u32 s13, s13, 4096
                s_mov_b32 m0, s13
                s_nop 0
                """)
                e.vmem(f"buffer_load_dwordx4 v{vW4Bb if typeb else vW4B}, {R(R_W4)}, s12 offen lds", tag)
            def opAB(a=opA, b=opB):
                a(); b()
            ops.append(opAB)
        for n in range((len(ks_list) + 3) // 4):
            def opC(n=n):
                cand = [ks_list[min(4 * n + w, len(ks_list) - 1)] for w in range(4)]
                so = [(w4_rowbase(2 * k + 1) - 16) * 1152 for k in cand]
                la = [W4ADDR[k] + 8192 for k in cand]
                e(f"s_mov_b32 s12, {so[0]}\ns_mov_b32 s13, {la[0]}")
                for w in range(1, 4):
                    e(f"s_cmp_eq_u32 s3, {w}\ns_cselect_b32 s12, {so[w]}, s12\ns_cselect_b32 s13, {la[w]}, s13")
                e("s_mov_b32 m0, s13\ns_add_u32 s12, s12, s100")
                e.vmem(f"buffer_load_dwordx4 v{vW4C}, {R(R_W4)}, s12 offen lds", tag)
            ops.append(opC)
        return ops

    def gelu_fill(phi):
        acc = ACC + 24 * (phi % 2)
        fl = []
        for u in range(2):
            regs = [acc + 8 * t + 4 * u + r for t in range(3) for r in range(4)]
            o = TMP + 24 + 6 * u
            for half in range(2):
                ch = [gelu_chain(x, TMP + 6 * u * 2 + 6 * half + i, GK + 4 * u, GK + 4 * u + 1, GK + 4 * u + 2) for i, x in enumerate(regs[6 * half:6 * half + 6])]
                fl += interleave(ch)
            for p in range(6):
                fl.append(f"v_cvt_pk_bf16_f32 v{o+p}, v{regs[2*p]}, v{regs[2*p+1]}")
            def st(u=u, o=o):
                e(f"s_add_u32 s12, s97, {phi*6144 + u*8*18432}")
                e.vmem(f"buffer_store_dwordx4 v[{o}:{o+3}], v{vGA}, {R(R_WS)}, s12 offen sc1", f"gst{phi}")
                e.vmem(f"buffer_store_dwordx2 v[{o+4}:{o+5}], v{vGB}, {R(R_WS)}, s12 offen offset:1024 sc1", f"gst{phi}")
            fl.append(st)
        return fl
    def gflag(phi):
        def f():
            e.wait_vm_now(f"gst{phi}")
            e(f"s_add_u32 s12, s{sFGO}, {32*phi}")
            e.vmem(f"buffer_store_dwordx2 v[{vNON}:{vNON+1}], v19, {R(R_WS)}, s12 offen sc1", "flagst")
        return f
    GREG = [144, 192, 0]
    def g_poll_issue(phi):
        def f():
            e(f"""
            s_add_u32 s12, s{sFGB}, {32*phi}
            v_lshlrev_b32 v{vFA}, 3, v{vM}
            v_add_u32 v{vFA}, s12, v{vFA}
            """)
            poll_issue(e)
        return f
    def g_loads(phi):
        ops = [lambda: poll_check(e, 0xf)]
        for k in range(6):
            def f(k=k):
                e(f"s_add_u32 s12, s96, {(6*phi+k)*1024}\ns_add_u32 s13, s12, {8*18432}")
                for u in range(2):
                    a = GREG[phi] + 8 * k + 4 * u
                    e.vmem(f"buffer_load_dwordx4 a[{a}:{a+3}], v{vL16}, {R(R_WS)}, s{12+u} offen sc1", f"g{6*phi+k}")
            ops.append(f)
        return ops
    nop8 = ["s_nop 0"] * 0

    fragcnt = 0
    def c_phase(phi, fillers):
        nonlocal fragcnt
        acc = ACC + 24 * (phi % 2)
        items = []
        for s in range(18):
            for t in range(3):
                f = AF + 4 * (fragcnt % 8); fragcnt += 1
                base = CREG[phi] + s * 3072 if not (phi == 2 and s == 17) else R0
                rd = tr_reads(f, vTR, base + t * 32, 768)
                ms = [mf(acc + 8 * t + 4 * u, f"v[{f}:{f+3}]", f"a[{72*u+4*s}:{72*u+4*s+3}]", s == 0) for u in range(2)]
                pre = (lambda s=s: e.wait_vm_now(f"x1{s}")) if (phi == 0 and t == 0) else None
                items.append((rd, ms, pre))
        mfma_stream(e, items, fillers, dist=4)
        if phi == 0:
            stats_setup()
        for t in range(3):
            ra = RA + 4 * (t % 2)
            e(f"v_mov_b32 v{ra}, v{CS+3*phi+t}\ns_nop 1")
            for u in range(2):
                e(mf(acc + 8 * t + 4 * u, f"v[{ra}:{ra+3}]", f"v[{RBF+4*u}:{RBF+4*u+3}]", False))

    def piece_dma():
        e(f"s_add_u32 s15, s99, 192")
        triple_voffs(e, 9216, False, 15)
        triple_dma(e, R_W3, 9216, R0, 1, "w4a", ks0=17)

    pad = ["s_nop 0"] * 4
    c_phase(0, [])
    e.stamp(13)
    e("s_barrier")
    c_phase(1, [piece_dma] + w4_dma_ops(list(range(0, 5)), "w4a") + pad + gelu_fill(0) + pad * 3 + [gflag(0)])
    e.wait_vm_now("w4a")
    e("s_barrier")
    c_phase(2, w4_dma_ops(list(range(5, 11)), "w4b") + [g_poll_issue(0)] + gelu_fill(1)[:60] + g_loads(0) + gelu_fill(1)[60:] + pad * 3 + [gflag(1)])
    e.wait_vm_now("w4b")
    e("s_barrier")
    e.stamp(14)
    DA = 48
    def mfa(acc, a_, b_, first):
        c = "0" if first else f"a[{acc}:{acc+3}]"
        return f"v_mfma_f32_16x16x32_bf16 a[{acc}:{acc+3}], {a_}, {b_}, {c}"
    def d_item(k, tau, first_of_k):
        nonlocal fragcnt
        f = AF + 4 * (fragcnt % 8); fragcnt += 1
        rd = tr_reads(f, vTR4, W4ADDR[k] + tau * 32, 2304)
        g = GREG[k // 6] + 8 * (k % 6)
        ms = [mfa(DA + 8 * tau + 4 * u, f"v[{f}:{f+3}]", f"a[{g+4*u}:{g+4*u+3}]", k == 0) for u in range(2)]
        pre = (lambda k=k: e.wait_vm_now(f"g{k}")) if first_of_k else None
        return (rd, ms, pre)
    g2 = gelu_fill(2)
    items = [d_item(k, tau, tau == 0) for k in range(0, 5) for tau in range(9)]
    mfma_stream(e, items, w4_dma_ops(list(range(11, 16)), "w4c") + [g_poll_issue(1)] + g2[:100] + g_loads(1) + g2[100:])
    e.wait_vm_now("w4c")
    e("s_barrier")
    XR2 = TMP + 40
    def fin_prep():
        e(f"""
        s_lshl_b32 s12, s{sRB}, 2
        s_add_u32 s12, s12, s{sSIG}
        s_mul_i32 s12, s12, 9                 ; (rb*4+nb)*9
        s_lshl_b32 s98, s12, 15
        s_lshl_b32 s13, s3, 10
        s_add_u32 s98, s98, s13
        s_add_u32 s98, s98, {PBUF}            ; + T*32768 + src*4096
        s_lshl_b32 s99, s12, 8
        s_lshl_b32 s13, s3, 6
        s_add_u32 s99, s99, s13
        s_add_u32 s99, s99, {FP}              ; + T*256 + src*8
        s_mul_i32 s12, s{sSIG}, 9
        s_add_u32 s12, s12, s{sXCD}           ; G own
        s_lshl_b32 s12, s12, 9
        s_mul_i32 s13, s101, 18432
        s_add_u32 s12, s12, s13
        s_add_u32 s12, s12, {X1BUF}
        s_add_u32 s13, s12, 18432
        """)
        e.vmem(f"buffer_load_dwordx2 v[{XR2}:{XR2+1}], v{vGB}, {R(R_WS)}, s12 offen sc1", "xr")
        e.vmem(f"buffer_load_dwordx2 v[{XR2+2}:{XR2+3}], v{vGB}, {R(R_WS)}, s13 offen sc1", "xr")
        e(f"""
        s_mul_i32 s12, s{sSIG}, 9
        s_add_u32 s12, s12, 8
        s_lshl_b32 s12, s12, 9
        s_lshl_b32 s13, s{sRB}, 3
        s_add_u32 s13, s13, s{sXCD}
        s_mul_i32 s13, s13, 18432
        s_add_u32 s12, s12, s13
        s_add_u32 s12, s12, {X1BUF}
        """)
        e.vmem(f"buffer_load_dwordx2 v[{XR2+4}:{XR2+5}], v{vGB}, {R(R_WS)}, s12 offen sc1", "xr")
    items = [d_item(k, tau, tau == 0) for k in range(5, 12) for tau in range(9)]
    mfma_stream(e, items, [], batches=[
        (0, 12, [gflag(2)] + w4_dma_ops([16, 17], "w4d") + [fin_prep]),
        (30, 32, [g_poll_issue(2)]),
        (46, 56, g_loads(2)),
    ])
    e.wait_vm_now("w4d")
    e("s_barrier")
    e.stamp(15)
    def p_epi(tau):
        o = TMP + 8 * (tau % 2)
        fl = []
        for r in range(8):
            fl.append(f"v_accvgpr_read_b32 v{o+r}, a{DA+8*tau+r}")
        q_ = TMP + 16 + 4 * (tau % 2)
        for p in range(4):
            fl.append(f"v_cvt_pk_bf16_f32 v{q_+p}, v{o+2*p}, v{o+2*p+1}")
        def st():
            if tau == 0:
                e("s_mov_b32 s12, 8")
            else:
                e(f"s_add_u32 s12, s{sXCD}, {tau}\ns_and_b32 s12, s12, 7")
            e(f"""
            s_lshl_b32 s12, s12, 3
            s_add_u32 s12, s12, s{sXCD}
            s_lshl_b32 s12, s12, 12
            s_add_u32 s12, s12, s98
            """)
            e.vmem(f"buffer_store_dwordx4 v[{q_}:{q_+3}], v{vL16}, {R(R_WS)}, s12 offen sc1", f"p{tau}")
        fl.append(st)
        return fl
    def p_flag(tau):
        def f():
            e.wait_vm_now(f"p{tau}")
            if tau == 0:
                e("s_mov_b32 s12, 8")
            else:
                e(f"s_add_u32 s12, s{sXCD}, {tau}\ns_and_b32 s12, s12, 7")
            e(f"""
            s_lshl_b32 s12, s12, 5
            s_add_u32 s12, s12, s{sXCD}
            s_lshl_b32 s12, s12, 3
            s_add_u32 s12, s12, s99
            """)
            e.vmem(f"buffer_store_dwordx2 v[{vNON}:{vNON+1}], v19, {R(R_WS)}, s12 offen sc1", "flagst")
        return f
    items = [d_item(k, tau, tau == 0) for tau in range(9) for k in range(12, 18)]
    bt = []
    for tau in range(8):
        bt.append((6 * (tau + 1) + 2, 6 * (tau + 2), p_epi(tau)))
        if tau + 5 <= 8:
            bt.append((6 * (tau + 5), 6 * (tau + 5) + 1, [p_flag(tau)]))
    mfma_stream(e, items, [], batches=bt)
    for tau in range(4, 8):
        p_flag(tau)()
    def finish(vals, nvals, xr, outreg):
        for p in range(nvals // 2):
            x0, x1 = vals + 2 * p, vals + 2 * p + 1
            e(f"""
            v_cvt_pk_bf16_f32 v{x1}, v{x0}, v{x1}
            v_lshlrev_b32 v{x0}, 16, v{x1}
            v_and_b32 v{x1}, 0xffff0000, v{x1}
            v_lshlrev_b32 v{vTMPA}, 16, v{xr+p}
            v_and_b32 v{vTMPB}, 0xffff0000, v{xr+p}
            v_add_f32 v{x0}, v{x0}, v{vTMPA}
            v_add_f32 v{x1}, v{x1}, v{vTMPB}
            v_cvt_pk_bf16_f32 v{outreg+p}, v{x0}, v{x1}
            """)
    vOA = XF + 54
    e(f"""
    v_mul_u32_u24 v{vOA}, 1152, v{vM}
    v_lshl_add_u32 v{vOA}, v{vQ}, 3, v{vOA}
    v_lshlrev_b32 v{vFA}, 3, v{vM}
    s_add_u32 s12, s99, {8*256}
    v_add_u32 v{vFA}, s12, v{vFA}
    s_lshr_b32 s12, s{sXCD}, 1
    s_cmp_lg_u32 s12, s3
    s_cbranch_scc1 L_no8
    """)
    save = list(e.vm)
    poll_issue(e)
    poll_check(e, 0xff)
    PL = XF
    e(f"""
    s_and_b32 s12, s{sXCD}, 1
    s_lshl_b32 s12, s12, 3
    s_add_u32 s12, s12, s98
    s_add_u32 s12, s12, {8*32768}
    """)
    for src in range(8):
        e(f"buffer_load_dwordx2 v[{PL+2*src}:{PL+2*src+1}], v{vL16}, {R(R_WS)}, s12 offen sc1\ns_add_u32 s12, s12, 4096")
    e("s_waitcnt vmcnt(0)")
    V = TMP
    for p in range(2):
        e(f"v_lshlrev_b32 v{V+2*p}, 16, v{PL+p}\nv_and_b32 v{V+2*p+1}, 0xffff0000, v{PL+p}")
    for src in range(1, 8):
        for p in range(2):
            e(f"""
            v_lshlrev_b32 v{vTMPA}, 16, v{PL+2*src+p}
            v_and_b32 v{vTMPB}, 0xffff0000, v{PL+2*src+p}
            v_add_f32 v{V+2*p}, v{V+2*p}, v{vTMPA}
            v_add_f32 v{V+2*p+1}, v{V+2*p+1}, v{vTMPB}
            """)
    finish(V, 4, XR2 + 4, TMP + 8)
    e(f"""
    s_lshl_b32 s12, s{sRB}, 3
    s_add_u32 s12, s12, s{sXCD}
    s_mul_i32 s12, s12, {16*1152}
    s_mul_i32 s13, s{sSIG}, 288
    s_add_u32 s12, s12, s13
    s_add_u32 s12, s12, 256
    buffer_store_dwordx2 v[{TMP+8}:{TMP+9}], v{vOA}, {R(R_OUT)}, s12 offen
    L_no8:
    """)
    e.vm = save + ["misc"]
    e(f"""
    s_lshl_b32 s12, s{sXCD}, 8
    s_add_u32 s12, s12, s99
    v_lshlrev_b32 v{vFA}, 3, v{vM}
    v_add_u32 v{vFA}, s12, v{vFA}
    s_lshl_b32 s15, 1, s{sXCD}
    s_xor_b32 s15, s15, 0xff
    """)
    poll_issue(e)
    for r in range(8):
        e(f"v_accvgpr_read_b32 v{V+r}, a{DA+64+r}")
    poll_check_s(e, 15)
    e(f"s_lshl_b32 s13, s{sXCD}, 15\ns_add_u32 s13, s13, s98")
    for d in range(1, 8):
        e(f"""
        s_add_u32 s12, s{sXCD}, {d}
        s_and_b32 s12, s12, 7
        s_lshl_b32 s12, s12, 12
        s_add_u32 s12, s12, s13
        """)
        e.vmem(f"buffer_load_dwordx4 v[{PL+4*(d-1)}:{PL+4*(d-1)+3}], v{vL16}, {R(R_WS)}, s12 offen sc1", f"pl{d}")
    for d in range(1, 8):
        e.wait_vm_now(f"pl{d}")
        for p in range(4):
            r_ = PL + 4 * (d - 1) + p
            e(f"""
            v_lshlrev_b32 v{vTMPA}, 16, v{r_}
            v_and_b32 v{vTMPB}, 0xffff0000, v{r_}
            v_add_f32 v{V+2*p}, v{V+2*p}, v{vTMPA}
            v_add_f32 v{V+2*p+1}, v{V+2*p+1}, v{vTMPB}
            """)
    finish(V, 8, XR2, TMP + 8)
    e(f"""
    s_mul_i32 s12, s101, {16*1152}
    s_mul_i32 s13, s{sSIG}, 288
    s_add_u32 s12, s12, s13
    s_lshl_b32 s13, s{sXCD}, 5
    s_add_u32 s12, s12, s13
    s_add_u32 s13, s12, {16*1152}
    buffer_store_dwordx2 v[{TMP+8}:{TMP+9}], v{vOA}, {R(R_OUT)}, s12 offen
    buffer_store_dwordx2 v[{TMP+10}:{TMP+11}], v{vOA}, {R(R_OUT)}, s13 offen
    """)
    if STAMPS:
        e(f"""
        s_memrealtime s[96:97]
        s_waitcnt lgkmcnt(0)
        s_lshl_b32 s12, s2, 2
        s_add_u32 s12, s12, s3
        s_lshl_b32 s12, s12, 8
        s_add_u32 s12, s12, {STAMPBUF}
        """)
        for i in range(17):
            e(f"""
            v_mov_b32 v{TMP+20}, s{64+2*i}
            v_mov_b32 v{TMP+21}, s{65+2*i}
            buffer_store_dwordx2 v[{TMP+20}:{TMP+21}], v19, {R(R_WS)}, s12 offen offset:{8*i}
            s_nop 1
            """)
    e("L_end:\ns_endpgm")
    return e

def build_text(code_size):
    e = gen()
    s = HEADER + f"; @launch grid=(256,1,1) block=(256,1,1) lds={LDS_TOTAL}\n"
    s += '.amdgcn_target "amdgcn-amd-amdhsa--gfx950"\n.text\n' + e.text().replace("CODE_SIZE", hex(code_size)) + kd(NAME, 512, 256)
    return s

def main(path):
    import subprocess, os
    s = build_text(0x1000)
    open(path, "w").write(s)
    r = subprocess.run(f"clang -x assembler -target amdgcn-amd-amdhsa -mcpu=gfx950 -c {path} -o _g2.o && llvm-readelf -S _g2.o", shell=True, capture_output=True, text=True)
    if r.returncode:
        print(r.stderr[:3000]); sys.exit(1)
    sz = int(re.search(r"\.text\s+PROGBITS\s+\w+\s+\w+\s+(\w+)", r.stdout).group(1), 16)
    print("code size", sz)
    s = build_text((sz - 128) & ~3)
    open(path, "w").write(s)

if __name__ == "__main__":
    STAMPS = "--stamps" in sys.argv
    main(sys.argv[1])
```

```python
from gen_common import *
import sys, re
import gen2
from gen2 import G, srd, R, xq_reduce, stats_finish, gelu_chain, interleave, cost, mfma_stream, mf

NAME = "standalone__mixer_s_mlp__sampling_kernel"
HBUF = 0
X1BUF = 0x120000
STBUF = 0x240000
CSBUF = 0x260000
FH = 0x270000
FX = 0x271000
FCS = 0x272000
FG = 0x274000
FP = 0x280000
GBUF = 0x300000
PBUF = 0xC00000
WSEND = 0x1600000
STAMPBUF = 0x1E00000

S_X, S_W1, S_W2, S_W3, S_W4, S_OUT, S_DBG, S_WS = 16, 18, 20, 22, 24, 26, 28, 30
R_X, R_W1, R_W2, R_W3, R_W4, R_WS, R_OUT, R_DBG = 32, 36, 40, 44, 48, 52, 56, 60
sXCD, sIDX, sRG, sJ, sSIG, sRB = 4, 5, 6, 7, 8, 9
sNON = 10
sFB, sW3C, sROT, sST0, sGB, sFGB, sFGO, sW4B, sPB, sFPB, sHROT, sT0, sT1, sT2, sT3, sT4 = range(16, 32)

vQ, vM, vZERO = 1, 2, 3
vDL = 4
vDS = 5
vLB = 6
vL16 = 10
vW4A, vW4B, vW4C = 11, 12, 13
vCUR = 14
vONE, vL0 = 18, 19
vFL, vFA, vNON = 20, 22, 24
vTR4 = 26
vTMPA, vTMPB, vTMPC = 29, 30, 31
XF, AF, ACC, TMP = 32, 104, 136, 208
vSG = 23

RA, RB, RS = 0, 73728, 147456
LDS_TOTAL = 163840
STAMPS = False
BOUND = "0x8000"

def poll_issue(e, tag="flag"):
    e.vmem(f"buffer_load_dwordx2 v[{vFL}:{vFL+1}], v{vFA}, {R(R_WS)}, 0 offen sc1", tag)

def poll_check(e, mask, tag="flag", sleep=1):
    L = e.label("poll")
    e.wait_vm_now(tag)
    e(f"""
    s_mov_b32 s14, 0
    {L}:
    v_cmp_ne_u64 vcc, v[{vFL}:{vFL+1}], v[{vNON}:{vNON+1}]
    s_and_b32 s12, vcc_lo, {mask}
    s_cbranch_scc0 {L}_ok
    s_add_u32 s14, s14, 1
    s_cmp_gt_u32 s14, {BOUND}
    s_cbranch_scc1 {L}_ok
    s_sleep {sleep}
    buffer_load_dwordx2 v[{vFL}:{vFL+1}], v{vFA}, {R(R_WS)}, 0 offen sc1
    s_waitcnt vmcnt(0)
    s_branch {L}
    {L}_ok:
    """)

def line_voff(e, pitch, w1swap):
    e(f"""
    v_lshrrev_b32 v{vTMPA}, 3, v0                  ; row
    v_and_b32 v{vTMPB}, 6, v{vTMPA}
    v_and_b32 v{vTMPC}, 7, v0
    v_xor_b32 v{vTMPB}, v{vTMPB}, v{vTMPC}         ; idx
    v_lshlrev_b32 v{vTMPB}, 2, v{vTMPB}
    v_mov_b32 v{vTMPC}, 0x75643120
    v_lshrrev_b32 v{vTMPB}, v{vTMPB}, v{vTMPC}
    v_and_b32 v{vTMPB}, 7, v{vTMPB}                ; piece
    """)
    if w1swap:
        e(f"""
        v_and_b32 v{vTMPC}, 4, v{vTMPA}
        v_add_u32 v{vTMPA}, v{vTMPA}, v{vTMPC}
        """)
    e(f"""
    v_mul_u32_u24 v{vDL}, {pitch}, v{vTMPA}
    v_lshl_add_u32 v{vDL}, v{vTMPB}, 4, v{vDL}
    """)

def line_dma_ops(e, rsrc, pitch, region, scol, srot, tag, w1swap=False, issue_rot=None):
    ops = []
    for n in range(18):
        def op(n=n):
            if issue_rot is None:
                e(f"s_mul_i32 s12, s3, 18\ns_add_u32 s12, s12, {n}")
            else:
                e(f"""
                s_add_u32 s12, s{issue_rot}, {n}
                s_sub_u32 s13, s12, 18
                s_cmp_ge_u32 s12, 18
                s_cselect_b32 s12, s13, s12
                s_mul_i32 s13, s3, 18
                s_add_u32 s12, s12, s13
                """)
            e(f"""
            s_lshl_b32 s13, s12, 10
            s_add_u32 s13, s13, {region}
            s_mov_b32 m0, s13
            """)
            if srot is not None:
                e(f"""
                s_lshl_b32 s13, s{srot}, 2
                s_add_u32 s12, s12, s13
                s_sub_u32 s13, s12, 72
                s_cmp_ge_u32 s12, 72
                s_cselect_b32 s12, s13, s12
                """)
            if w1swap:
                e(f"""
                s_and_b32 s13, s12, 1
                s_lshl_b32 s12, s12, 1
                s_sub_u32 s12, s12, s13
                s_mul_i32 s12, s12, {4*pitch}
                """)
            else:
                e(f"s_mul_i32 s12, s12, {8*pitch}")
            e(f"s_add_u32 s12, s12, s{scol}")
            e.vmem(f"buffer_load_dwordx4 v{vDL}, {R(rsrc)}, s12 offen lds", tag)
        ops.append(op)
    return ops

def single_dma_ops(e, slots, ldsbase, tag):
    ops = []
    s0, cnt = slots[0], len(slots)
    for n in range((cnt + 3) // 4):
        def op(n=n):
            e(f"""
            s_add_u32 s12, s3, {4*n}
            s_min_u32 s12, s12, {cnt-1}
            s_lshl_b32 s13, s12, 10
            s_add_u32 s13, s13, {ldsbase}
            s_mov_b32 m0, s13
            s_add_u32 s12, s12, s{sROT}
            s_add_u32 s12, s12, {s0}
            s_sub_u32 s13, s12, 18
            s_cmp_ge_u32 s12, 18
            s_cselect_b32 s12, s13, s12
            s_mul_i32 s12, s12, {32*9216}
            """)
            e.vmem(f"buffer_load_dwordx4 v{vDS}, {R(R_W3)}, s12 offen lds", tag)
        ops.append(op)
    return ops

class Ring:
    cnt = 0
def nextfrag():
    f = AF + 4 * (Ring.cnt % 8); Ring.cnt += 1
    return f

def line_items(e, region, mk_mfmas, pre=None, tiles=range(4)):
    items = []
    for s in range(18):
        for t in tiles:
            f = nextfrag()
            hi = s >= 9
            off = (s - 9 * hi) * 4096
            b = (vCUR if not hi else vLB2) + t
            rd = [f"ds_read_b64_tr_b16 v[{f}:{f+1}], v{b} offset:{off}",
                  f"ds_read_b64_tr_b16 v[{f+2}:{f+3}], v{b} offset:{off+1024}"]
            items.append((rd, mk_mfmas(s, t, f), pre(s) if (pre and t == tiles[0]) else None))
    return items
vLB2 = TMP + 44

def set_bases(e, region):
    for t in range(4):
        e(f"v_add_u32 v{vCUR+t}, {region}, v{vLB+t}")
        e(f"v_add_u32 v{vLB2+t}, {region+36864}, v{vLB+t}")

def gen():
    gen2.STAMPS = STAMPS
    Ring.cnt = 0
    e = G()
    e.lines.append(kstart(NAME))
    e("s_cmp_ge_u32 s2, 256\ns_cbranch_scc1 L_end")
    e.stamp(0)
    e(f"""
    s_load_dwordx16 s[16:31], s[0:1], 0
    s_memrealtime s[{sNON}:{sNON+1}]
    s_getpc_b64 s[98:99]
    v_lshrrev_b32 v1, 6, v0
    v_and_b32 v0, 63, v0
    s_nop 0
    v_readfirstlane_b32 s3, v1
    v_lshrrev_b32 v{vQ}, 4, v0
    v_and_b32 v{vM}, 15, v0
    v_mov_b32 v{vZERO}, 0
    v_lshlrev_b32 v{vL16}, 4, v0
    v_mov_b32 v{vONE}, 0x3f803f80
    s_and_b32 s{sXCD}, s2, 7
    s_lshr_b32 s{sIDX}, s2, 3
    s_cmp_lg_u32 s{sIDX}, 0
    s_cbranch_scc1 L_nopf
    v_lshlrev_b32 v{vTMPA}, 7, v0
    s_lshl_b32 s12, s3, 13
    v_add_u32 v{vTMPA}, s12, v{vTMPA}
    v_add_u32 v{vTMPB}, 0x8000, v{vTMPA}
    v_min_u32 v{vTMPA}, CODE_SIZE, v{vTMPA}
    v_min_u32 v{vTMPB}, CODE_SIZE, v{vTMPB}
    global_load_dword v{TMP+43}, v{vTMPA}, s[98:99]
    global_load_dword v{TMP+42}, v{vTMPB}, s[98:99]
    L_nopf:
    s_and_b32 s{sSIG}, s{sIDX}, 3
    s_lshr_b32 s{sRB}, s{sIDX}, 2
    s_lshl_b32 s{sRG}, s{sXCD}, 1
    s_cmp_ge_u32 s{sIDX}, 9
    s_cselect_b32 s12, 1, 0
    s_cselect_b32 s13, 9, 0
    s_add_u32 s{sRG}, s{sRG}, s12
    s_sub_u32 s{sJ}, s{sIDX}, s13
    v_cmp_eq_u32 vcc, 0, v0
    v_mov_b32 v{vL0}, 0x7ff00000
    v_lshrrev_b32 v{vTMPA}, 3, v0
    v_cndmask_b32 v{vL0}, v{vL0}, v{vZERO}, vcc
    v_lshrrev_b32 v{vTMPB}, 1, v{vTMPA}
    v_and_b32 v{vTMPC}, 7, v0
    v_xor_b32 v{vTMPB}, v{vTMPB}, v{vTMPC}
    v_mul_u32_u24 v{TMP}, 1152, v{vTMPA}
    v_lshl_add_u32 v{TMP}, v{vTMPB}, 4, v{TMP}
    v_xor_b32 v{TMP+1}, 64, v{TMP}
    v_add_u32 v{TMP+1}, {8*1152}, v{TMP+1}
    """)
    line_voff(e, 1152, True)
    e("s_waitcnt lgkmcnt(0)")
    srd(e, R_X, S_X, 1024 * 1152)
    srd(e, R_W1, S_W1, 576 * 1152)
    e(f"""
    s_cmp_ge_u32 s{sIDX}, 18
    s_cbranch_scc1 L_skipx
    s_lshl_b32 s12, s{sRG}, 6
    s_lshl_b32 s13, s3, 4
    s_add_u32 s12, s12, s13
    s_mul_i32 s15, s12, 1152
    s_mul_i32 s14, s3, 18432
    s_add_u32 s14, s14, {RB}
    s_mov_b32 s100, s{sJ}
    """)
    for n in range(9):
        e(f"""
        s_lshl_b32 s12, s100, 11
        s_add_u32 s12, s12, s14
        s_mov_b32 m0, s12
        s_lshl_b32 s13, s100, 7
        s_add_u32 s13, s13, s15
        s_add_u32 s12, s12, 1024
        buffer_load_dwordx4 v{TMP}, {R(R_X)}, s13 offen lds
        s_mov_b32 m0, s12
        s_add_u32 s100, s100, 1
        s_cmp_eq_u32 s100, 9
        buffer_load_dwordx4 v{TMP+1}, {R(R_X)}, s13 offen lds
        s_cselect_b32 s100, 0, s100
        """)
    e(f"s_lshl_b32 s15, s{sJ}, 7\ns_mov_b32 s101, s{sRG}")
    e.vm = ["x"] * 18
    w1ops = line_dma_ops(e, R_W1, 1152, RA, 15, None, "w1", w1swap=True, issue_rot=101)
    for op in w1ops[:NW1_EARLY]: op()
    w1ops = w1ops[NW1_EARLY:]
    vm_front = list(e.vm)
    e("L_skipx:")
    srd(e, R_W2, S_W2, 576 * 1152)
    srd(e, R_W3, S_W3, 576 * 9216)
    srd(e, R_W4, S_W4, 4608 * 1152)
    srd(e, R_WS, S_WS, 0x10000000 if STAMPS else WSEND)
    srd(e, R_OUT, S_OUT, 1024 * 1152)
    srd(e, R_DBG, S_DBG, 256)
    e.stamp(1)
    e(f"""
    s_or_b32 s12, s2, s3
    s_cmp_lg_u32 s12, 0
    s_cbranch_scc1 L_nononce
    s_or_b32 s{sNON+1}, s{sNON+1}, 0x40000000
    v_mov_b32 v{vNON}, s{sNON}
    v_mov_b32 v{vNON+1}, s{sNON+1}
    buffer_store_dwordx2 v[{vNON}:{vNON+1}], v{vL0}, {R(R_DBG)}, 0 offen sc1
    L_nononce:
    """)
    e(f"""
    v_lshrrev_b32 v{vTMPA}, 5, v0
    v_lshlrev_b32 v{vTMPA}, 4, v{vTMPA}
    v_bfe_u32 v{vTMPB}, v0, 4, 1
    v_lshl_add_u32 v{vTMPA}, v{vTMPB}, 2, v{vTMPA}
    v_bfe_u32 v{vTMPB}, v0, 2, 2
    v_add_u32 v{vTMPA}, v{vTMPA}, v{vTMPB}             ; row (t=0)
    v_and_b32 v{vTMPB}, 3, v0
    v_lshlrev_b32 v{vTMPB}, 3, v{vTMPB}                ; c*8
    v_mul_u32_u24 v{vTR4}, 288, v{vTMPA}
    v_add_u32 v{vTR4}, v{vTR4}, v{vTMPB}
    v_add_u32 v{vTR4+1}, 0x10000, v{vTR4}
    v_add_u32 v{vTR4+2}, 0x20000, v{vTR4}
    v_lshl_add_u32 v{vSG}, v{vTMPA}, 5, v{vTMPB}
    v_lshl_add_u32 v{vLB}, v{vTMPA}, 7, v{vTMPB}       ; row*128 + c*8
    v_bfe_u32 v{vTMPC}, v{vTMPA}, 1, 2                 ; kappa
    v_lshl_add_u32 v{vLB}, v{vTMPC}, 5, v{vLB}         ; tau=0
    v_xor_b32 v{vLB+1}, 32, v{vLB}
    v_xor_b32 v{vLB+2}, 64, v{vLB}
    v_xor_b32 v{vLB+3}, 96, v{vLB}
    s_lshl_b32 s{sFB}, s{sXCD}, 2
    s_add_u32 s{sFB}, s{sFB}, s{sSIG}
    s_mul_i32 s{sW3C}, s{sXCD}, 1152
    s_lshl_b32 s12, s{sSIG}, 5
    s_add_u32 s12, s12, s{sW3C}
    s_add_u32 s12, s12, 1024
    s_lshl_b32 s13, s{sSIG}, 8
    s_add_u32 s{sW3C}, s{sW3C}, s13
    s_mul_i32 s{sROT}, s{sSIG}, 9
    s_lshr_b32 s{sROT}, s{sROT}, 1      ; 0,4,9,13
    v_lshrrev_b32 v{vTMPA}, 1, v0
    v_mul_u32_u24 v{vDS}, 9216, v{vTMPA}
    v_and_b32 v{vTMPA}, 1, v0
    v_lshl_add_u32 v{vDS}, v{vTMPA}, 4, v{vDS}
    v_add_u32 v{vDS}, s12, v{vDS}
    s_cmp_ge_u32 s{sIDX}, 18
    s_cbranch_scc1 L_idle
    """)
    def nonce_load():
        e.vmem(f"buffer_load_dwordx2 v[{vNON}:{vNON+1}], v{vZERO}, {R(R_DBG)}, 0 offen sc1", "nonce")
    def nonce_check():
        L = e.label("non")
        e(f"""
        s_mov_b32 s14, 0
        {L}:
        v_cmp_ne_u32 vcc, 0, v{vNON+1}
        s_cbranch_vccnz {L}_ok
        s_add_u32 s14, s14, 1
        s_cmp_gt_u32 s14, {BOUND}
        s_cbranch_scc1 {L}_ok
        s_sleep 1
        buffer_load_dwordx2 v[{vNON}:{vNON+1}], v{vZERO}, {R(R_DBG)}, 0 offen sc1
        s_waitcnt vmcnt(0)
        s_branch {L}
        {L}_ok:
        """)
    e.vm = vm_front
    XA = TMP + 2
    XR = TMP + 32
    e(f"""
    v_lshrrev_b32 v{vTMPA}, 1, v{vM}
    v_xor_b32 v{vTMPB}, v{vTMPA}, v{vQ}
    v_lshlrev_b32 v{XA}, 7, v{vM}
    v_add_u32 v{XA}, s14, v{XA}
    v_and_b32 v{vTMPC}, 2, v{vQ}
    v_xor_b32 v{vTMPC}, v{vTMPC}, v{vTMPA}
    v_lshl_add_u32 v{XA+2}, v{vTMPC}, 4, v{XA}
    v_and_b32 v{vTMPC}, 1, v{vQ}
    v_lshl_add_u32 v{XA+2}, v{vTMPC}, 3, v{XA+2}
    s_lshl_b32 s12, s{sJ}, 11
    v_add_u32 v{XA+2}, s12, v{XA+2}
    v_xor_b32 v{XA+3}, 16, v{XA+2}
    v_xor_b32 v{XA+4}, 64, v{XA+2}
    v_xor_b32 v{XA+5}, 80, v{XA+2}
    v_lshl_add_u32 v{XA}, v{vTMPB}, 4, v{XA}
    v_xor_b32 v{XA+1}, 64, v{XA}
    s_lshl_b32 s{sHROT}, s{sJ}, 1
    """)
    e.wait_vm_now("x")
    e.stamp(2)
    for s in range(18):
        e(f"ds_read_b128 v[{XF+4*s}:{XF+4*s+3}], v{XA+(s&1)} offset:{(s>>1)*2048}")
        if s == 11: e("s_waitcnt lgkmcnt(8)")
    S0, S1 = TMP + 10, TMP + 11
    e(f"v_mov_b32 v{S0}, 0\nv_mov_b32 v{S1}, 0")
    def dots(s):
        for k in range(4): e(f"v_dot2_f32_bf16 v{S0}, v{XF+4*s+k}, v{vONE}, v{S0}")
        for k in range(4): e(f"v_dot2_f32_bf16 v{S1}, v{XF+4*s+k}, v{XF+4*s+k}, v{S1}")
        if s % 2 == 0 and w1ops: w1ops.pop(0)()
    for s in range(4): dots(s)
    e("s_waitcnt lgkmcnt(6)")
    for i in range(4):
        e(f"ds_read_b64 v[{XR+2*i}:{XR+2*i+1}], v{XA+2+i}")
    for s in range(4, 8): dots(s)
    e("s_waitcnt lgkmcnt(0)")
    for s in range(8, 18): dots(s)
    e("s_nop 2")
    xq_reduce(e, [S0, S1], TMP + 12)
    stats_finish(e, S0, S1, TMP + 12, TMP + 13, TMP + 14)
    e(f"""
    v_rcp_f32 v{TMP+14}, v{TMP+13}
    s_nop 0
    v_mov_b32 v{TMP+15}, v{TMP+14}
    v_mul_f32 v{TMP+16}, -v{TMP+12}, v{TMP+14}
    v_mov_b32 v{TMP+17}, v{TMP+16}
    """)
    w2ops = None
    for r in range(72):
        t = TMP + 18 + 2 * (r % 4)
        e(f"""
        v_lshlrev_b32 v{t}, 16, v{XF+r}
        v_and_b32 v{t+1}, 0xffff0000, v{XF+r}
        v_pk_fma_f32 v[{t}:{t+1}], v[{t}:{t+1}], v[{TMP+14}:{TMP+15}], v[{TMP+16}:{TMP+17}]
        v_cvt_pk_bf16_f32 v{XF+r}, v{t}, v{t+1}
        """)
        if r % 4 == 3 and w1ops:
            w1ops.pop(0)()
        elif r % 8 == 7 and not w1ops:
            if w2ops is None:
                nonce_load()
                line_voff(e, 1152, False)
                w2ops = line_dma_ops(e, R_W2, 1152, RB, 15, sHROT, "w2")
            else:
                w2ops.pop(0)()
    assert not w1ops
    e.stamp(3)
    HA = TMP + 2
    e(f"""
    s_lshl_b32 s12, s{sRG}, 2
    s_and_b32 s13, s3, 2
    s_add_u32 s12, s12, s13
    s_mul_i32 s12, s12, 18432
    s_lshl_b32 s13, s{sJ}, 11
    s_add_u32 s{sT0}, s12, s13          ; (4rg + (w&2))*18432 + 8j*256
    s_and_b32 s13, s3, 1
    s_lshl_b32 s13, s13, 4
    v_add_u32 v{TMP+4}, s13, v{vM}      ; m32
    v_lshrrev_b32 v{TMP+5}, 1, v{vQ}
    """)
    for p in range(2):
        e(f"""
        s_lshl_b32 s12, s{sJ}, 2
        s_add_u32 s12, s12, {2*p}
        v_add_u32 v{vTMPA}, s12, v{TMP+5}              ; G
        v_mul_u32_u24 v{vTMPA}, 57, v{vTMPA}
        v_lshrrev_b32 v{vTMPA}, 9, v{vTMPA}            ; grp
        v_lshlrev_b32 v{vTMPA}, 3, v{vTMPA}
        v_mov_b32 v{vTMPB}, 0x00040103
        v_lshrrev_b32 v{vTMPA}, v{vTMPA}, v{vTMPB}
        v_and_b32 v{vTMPA}, 7, v{vTMPA}
        v_add_u32 v{vTMPA}, v{vTMPA}, v{TMP+4}
        v_subrev_u32 v{vTMPA}, 2, v{vTMPA}             ; dest
        v_cmp_gt_u32 s[{96+2*p}:{97+2*p}], 32, v{vTMPA}
        v_bfe_u32 v{vTMPB}, v{vTMPA}, 4, 1
        v_and_b32 v{vTMPA}, 15, v{vTMPA}
        v_mul_u32_u24 v{vTMPB}, 18432, v{vTMPB}
        v_lshl_add_u32 v{vTMPB}, v{vTMPA}, 4, v{vTMPB}
        v_lshl_add_u32 v{HA+p}, v{vQ}, 8, v{vTMPB}
        """)
    set_bases(e, RA)
    e.wait_vm_now("w1")
    e("s_barrier")
    e.stamp(4)
    abm = lambda s, t, f: [mf(ACC + 4 * t, f"v[{f}:{f+3}]", f"v[{XF+4*s}:{XF+4*s+3}]", s == 0)]
    mfma_stream(e, line_items(e, RA, abm), [], dist=6, batches=[(0, 60, w2ops)])
    e.stamp(5)
    e(f"""
    v_mov_b32 v{TMP+4}, {hex(f32bits(GC0))}
    v_mov_b32 v{TMP+5}, {hex(f32bits(GC1))}
    v_mov_b32 v{TMP+6}, 1.0
    s_add_u32 s12, s{sT0}, {HBUF}
    s_nop 4
    """)
    OUTR = XF
    for half in range(2):
        for p in range(4 * half, 4 * half + 4):
            x0, x1 = ACC + 2 * p, ACC + 2 * p + 1
            e(f"""
            v_cvt_pk_bf16_f32 v{x1}, v{x0}, v{x1}
            v_lshlrev_b32 v{x0}, 16, v{x1}
            v_and_b32 v{x1}, 0xffff0000, v{x1}
            """)
        for ins in interleave([gelu_chain(ACC + 8 * half + i, TMP + 12 + i, TMP + 4, TMP + 5, TMP + 6) for i in range(8)]): e(ins)
        for p in range(4 * half, 4 * half + 4):
            e(f"v_cvt_pk_bf16_f32 v{OUTR+p}, v{ACC+2*p}, v{ACC+2*p+1}")
        for p in range(4 * half, 4 * half + 4):
            e(f"v_cndmask_b32 v{OUTR+p}, 0, v{OUTR+p}, s[{96+2*half}:{97+2*half}]")
        e.vmem(f"buffer_store_dwordx4 v[{OUTR+4*half}:{OUTR+4*half+3}], v{HA+half}, {R(R_WS)}, s12 offen offset:{1024*half} sc1", "st")
    e.stamp(6)
    line_voff(e, 9216, False)
    set_bases(e, RB)
    e(f"""
    s_lshl_b32 s12, s{sRG}, 7
    s_lshl_b32 s{sT1}, s{sJ}, 3
    s_add_u32 s{sT1}, s{sT1}, s12       ; rg*128 + j*8
    s_add_u32 s12, s12, {FH}
    v_lshlrev_b32 v{vFA}, 3, v{vM}
    v_add_u32 v{vFA}, s12, v{vFA}
    s_add_u32 s13, s{sT1}, {FH}
    """)
    e.wait_all()
    nonce_check()
    e(f"""
    s_barrier
    s_cmp_lg_u32 s3, 0
    s_cbranch_scc1 L_nofh
    buffer_store_dwordx2 v[{vNON}:{vNON+1}], v{vL0}, {R(R_WS)}, s13 offen sc1
    L_nofh:
    """)
    e.stamp(7)
    w3a = line_dma_ops(e, R_W3, 9216, RA, sW3C, sROT, "w3a")
    for op in w3a[:NW3A_EARLY]: op()
    poll_issue(e)
    poll_check(e, "0x1ff")
    e.vm = []
    e.stamp(8)
    e(f"""
    s_lshl_b32 s12, s{sRG}, 2
    s_add_u32 s12, s12, s3
    s_mul_i32 s15, s12, 18432
    s_add_u32 s15, s15, {HBUF}
    s_lshl_b32 s14, s{sHROT}, 10
    """)
    e(f"s_mov_b32 s{sT3}, s14\ns_mov_b32 s{sT4}, s15")
    def hload(s):
        def f():
            e(f"s_add_u32 s12, s{sT3}, s{sT4}")
            for i in range(2):
                e.vmem(f"buffer_load_dwordx4 v[{XF+4*(s+i)}:{XF+4*(s+i)+3}], v{vL16}, {R(R_WS)}, s12 offen offset:{1024*i} sc1", f"h{s+i}")
            e(f"s_add_u32 s{sT3}, s{sT3}, 2048\ns_cmp_eq_u32 s{sT3}, 18432\ns_cselect_b32 s{sT3}, 0, s{sT3}")
        return f
    for s in range(0, HPD, 2): hload(s)()
    bt = [(4 * (s - HPD), 4 * (s - HPD) + 1, [hload(s)]) for s in range(HPD, 18, 2)]
    bt.append((4 * (18 - HPD), 72, w3a[NW3A_EARLY:]))
    mfma_stream(e, line_items(e, RB, abm, pre=lambda s: (lambda: e.wait_vm_now(f"h{s}"))), [], dist=6, batches=bt)
    e.stamp(9)
    e(f"""
    s_and_b32 s13, s3, 1
    s_mul_i32 s13, s13, 18432
    s_add_u32 s12, s{sT0}, s13
    s_add_u32 s12, s12, {X1BUF}
    v_mov_b32 v{S0}, 0
    v_mov_b32 v{S1}, 0
    s_nop 3
    """)
    for half in range(2):
        for p in range(4 * half, 4 * half + 4):
            x0, x1 = ACC + 2 * p, ACC + 2 * p + 1
            e(f"""
            v_cvt_pk_bf16_f32 v{x1}, v{x0}, v{x1}
            v_lshlrev_b32 v{x0}, 16, v{x1}
            v_and_b32 v{x1}, 0xffff0000, v{x1}
            v_lshlrev_b32 v{TMP+4}, 16, v{XR+p}
            v_and_b32 v{TMP+5}, 0xffff0000, v{XR+p}
            v_add_f32 v{x0}, v{x0}, v{TMP+4}
            v_add_f32 v{x1}, v{x1}, v{TMP+5}
            v_cvt_pk_bf16_f32 v{OUTR+p}, v{x0}, v{x1}
            """)
        e.vmem(f"buffer_store_dwordx4 v[{OUTR+4*half}:{OUTR+4*half+3}], v{vL16}, {R(R_WS)}, s12 offen offset:{1024*half} sc1", "st")
    for p in range(8): e(f"v_dot2_f32_bf16 v{S0}, v{OUTR+p}, v{vONE}, v{S0}")
    for p in range(8): e(f"v_dot2_f32_bf16 v{S1}, v{OUTR+p}, v{OUTR+p}, v{S1}")
    e(f"""
    s_mul_i32 s12, s{sJ}, 43
    s_lshr_b32 s12, s12, 7
    s_add_u32 s12, s12, s{sJ}
    s_lshl_b32 s12, s12, 3              ; (j + j/3)*8
    s_lshl_b32 s13, s{sRG}, 6
    s_lshl_b32 s14, s3, 4
    s_add_u32 s13, s13, s14
    s_lshl_b32 s13, s13, 7
    s_add_u32 s12, s12, s13
    s_add_u32 s12, s12, {STBUF}
    v_lshlrev_b32 v{vTMPA}, 7, v0
    v_cmp_gt_u32 vcc, 16, v0
    v_mov_b32 v{vTMPB}, 0x7ff00000
    """)
    xq_reduce(e, [S0, S1], TMP + 4)
    e(f"v_cndmask_b32 v{vTMPA}, v{vTMPB}, v{vTMPA}, vcc")
    e.vmem(f"buffer_store_dwordx2 v[{S0}:{S1}], v{vTMPA}, {R(R_WS)}, s12 offen sc1", "st")
    e.stamp(10)
    e(f"s_add_u32 s13, s{sT1}, {FX}\ns_add_u32 s{sT2}, s{sW3C}, 128")
    e.wait_all()
    e(f"""
    s_barrier
    s_cmp_lg_u32 s3, 0
    s_cbranch_scc1 L_nofx
    buffer_store_dwordx2 v[{vNON}:{vNON+1}], v{vL0}, {R(R_WS)}, s13 offen sc1
    L_nofx:
    """)
    w3b = line_dma_ops(e, R_W3, 9216, RB, sT2, sROT, "w3b")
    for op in w3b[:NW3B_EARLY]: op()
    e("s_branch L_cstart")
    e("L_idle:")
    e.vm = []
    e(f"""
    v_lshlrev_b32 v{vTMPA}, 7, v0
    s_sub_u32 s14, s{sIDX}, 18
    s_lshl_b32 s14, s14, 2
    s_add_u32 s14, s14, s3
    s_mul_i32 s15, s{sXCD}, 10
    s_add_u32 s15, s15, s14
    """)
    tcnt = 0
    for rs in (R_W1, R_W2):
        for r_ in range(2):
            e(f"""
            s_add_u32 s12, s15, {56*r_}
            s_sub_u32 s13, s12, 81
            s_cmp_ge_u32 s12, 81
            s_cselect_b32 s12, s13, s12
            s_sub_u32 s13, s12, 81
            s_cmp_ge_u32 s12, 81
            s_cselect_b32 s12, s13, s12
            s_lshl_b32 s12, s12, 13
            """)
            if r_ == 1:
                L = e.label("tch")
                e(f"s_cmp_ge_u32 s14, 25\ns_cbranch_scc1 {L}")
            e(f"buffer_load_dword v{TMP+tcnt}, v{vTMPA}, {R(rs)}, s12 offen")
            if r_ == 1: e(f"{L}:")
            tcnt += 1
    for r_ in range(2):
        e(f"""
        s_add_u32 s12, s14, {56*r_}
        s_lshl_b32 s12, s12, 6
        v_add_u32 v{vTMPB}, s12, v0
        v_mul_u32_u24 v{vTMPC}, 7282, v{vTMPB}
        v_lshrrev_b32 v{vTMPC}, 16, v{vTMPC}           ; row
        v_mul_u32_u24 v{TMP+20}, {9216-9*128}, v{vTMPC}
        v_lshl_add_u32 v{vTMPB}, v{vTMPB}, 7, v{TMP+20}
        s_mul_i32 s13, s{sXCD}, 1152
        buffer_load_dword v{TMP+tcnt}, v{vTMPB}, {R(R_W3)}, s13 offen
        """)
        tcnt += 1
    e(f"""
    s_lshl_b32 s12, s14, 13
    v_add_u32 v{vTMPB}, s12, v{vTMPA}
    v_add_u32 v{vTMPC}, {56*8192}, v{vTMPB}
    v_min_u32 v{vTMPC}, {663552-128}, v{vTMPC}
    s_mul_i32 s13, s{sXCD}, 663552
    buffer_load_dword v{TMP+tcnt}, v{vTMPB}, {R(R_W4)}, s13 offen
    buffer_load_dword v{TMP+tcnt+1}, v{vTMPC}, {R(R_W4)}, s13 offen
    """)
    line_voff(e, 9216, False)
    e(f"""
    s_add_u32 s{sT2}, s{sW3C}, 128
    s_cmp_lt_u32 s{sIDX}, 28
    s_cbranch_scc1 L_idle2
    """)
    for op in single_dma_ops(e, [16, 17], RA, "w"): op()
    e(f"""
    s_waitcnt vmcnt(0)
    s_barrier
    ds_read_b64_tr_b16 v[{XF}:{XF+1}], v{vSG} offset:{RA}
    ds_read_b64_tr_b16 v[{XF+2}:{XF+3}], v{vSG} offset:{RA+256}
    ds_read_b64_tr_b16 v[{XF+4}:{XF+5}], v{vSG} offset:{RA+1024}
    ds_read_b64_tr_b16 v[{XF+6}:{XF+7}], v{vSG} offset:{RA+1024+256}
    s_waitcnt lgkmcnt(0)
    s_barrier
    L_idle2:
    s_mul_i32 s101, s{sRB}, 5
    s_sub_u32 s101, s101, 20
    """)
    e.vm = []
    nonce_load()
    for op in line_dma_ops(e, R_W3, 9216, RA, sW3C, sROT, "w3", issue_rot=101): op()
    for op in line_dma_ops(e, R_W3, 9216, RB, sT2, sROT, "w3", issue_rot=101)[:NW3B_EARLY if False else 18]: op()
    for op in single_dma_ops(e, list(range(16)), RS, "w3"): op()
    e("s_waitcnt vmcnt(0)")
    nonce_check()
    e(f"""
    s_barrier
    s_cmp_lt_u32 s{sIDX}, 28
    s_cbranch_scc1 L_cjoin
    s_lshr_b32 s12, s3, 1
    s_mul_i32 s12, s12, 73728
    s_and_b32 s13, s3, 1
    s_lshl_b32 s13, s13, 6
    v_xor_b32 v{vCUR}, s13, v{vLB}
    v_add_u32 v{vCUR}, s12, v{vCUR}
    v_xor_b32 v{vCUR+1}, 32, v{vCUR}
    v_add_u32 v{vLB2}, 36864, v{vCUR}
    v_add_u32 v{vLB2+1}, 36864, v{vCUR+1}
    v_add_u32 v{vCUR+2}, {RS}, v{vSG}
    v_mov_b32 v{TMP+4}, v{vONE}
    v_mov_b32 v{TMP+5}, v{vONE}
    v_mov_b32 v{TMP+6}, v{vONE}
    v_mov_b32 v{TMP+7}, v{vONE}
    s_nop 1
    """)
    ones = f"v[{TMP+4}:{TMP+7}]"
    e(mf(ACC + 8, ones, f"v[{XF}:{XF+3}]", True))
    e(mf(ACC + 8, ones, f"v[{XF+4}:{XF+7}]", False))
    items = line_items(e, 0, lambda s, t, f: [mf(ACC + 4 * t, ones, f"v[{f}:{f+3}]", s == 0)], tiles=[0, 1])
    for s in range(16):
        f = nextfrag()
        items.append(([f"ds_read_b64_tr_b16 v[{f}:{f+1}], v{vCUR+2} offset:{s*1024}", f"ds_read_b64_tr_b16 v[{f+2}:{f+3}], v{vCUR+2} offset:{s*1024+256}"],
                      [mf(ACC + 8, ones, f"v[{f}:{f+3}]", False)], None))
    mfma_stream(e, items, [], dist=6)
    e(f"""
    s_lshl_b32 s12, s{sFB}, 10
    s_add_u32 s12, s12, {CSBUF}
    s_lshl_b32 s13, s3, 7
    s_add_u32 s13, s13, s12
    v_lshlrev_b32 v{vTMPA}, 2, v0
    v_cmp_gt_u32 vcc, 16, v0
    v_mov_b32 v{vTMPB}, 0x7ff00000
    s_nop 3
    v_cndmask_b32 v{vTMPA}, v{vTMPB}, v{vTMPA}, vcc
    """)
    for t in range(3):
        a = ACC + 4 * t
        dst = f"s13 offen offset:{64*t}" if t < 2 else "s12 offen offset:512"
        e(f"""
        v_and_b32 v{a+1}, 0xffff0000, v{a}
        v_sub_f32 v{a+2}, v{a}, v{a+1}
        v_cvt_pk_bf16_f32 v{a+1}, v{a+1}, v{a+2}
        buffer_store_dword v{a+1}, v{vTMPA}, {R(R_WS)}, {dst} sc1
        """)
    e(f"""
    s_waitcnt vmcnt(0)
    s_barrier
    s_lshl_b32 s13, s{sFB}, 6
    s_add_u32 s13, s13, {FCS}
    s_cmp_lg_u32 s3, 0
    s_cbranch_scc1 L_cjoin
    buffer_store_dwordx2 v[{vNON}:{vNON+1}], v{vL0}, {R(R_WS)}, s13 offen sc1
    L_cjoin:
    L_cstart:
    """)
    e.vm = []
    e.stamp(11)
    def w4_voff(dst, isrc):
        e(f"""
        v_add_u32 v{vTMPA}, {isrc}, v0
        v_mul_u32_u24 v{vTMPB}, 3641, v{vTMPA}
        v_lshrrev_b32 v{vTMPB}, 16, v{vTMPB}           ; row
        v_mul_u32_u24 v{vTMPC}, 18, v{vTMPB}
        v_sub_u32 v{vTMPA}, v{vTMPA}, v{vTMPC}         ; slot
        v_lshrrev_b32 v{vTMPC}, 1, v{vTMPA}            ; tau
        v_cmp_eq_u32 vcc, 0, v{vTMPC}
        v_add_u32 v{vTMPC}, s{sXCD}, v{vTMPC}
        v_and_b32 v{vTMPC}, 7, v{vTMPC}
        v_add_u32 v{vTMPC}, s14, v{vTMPC}
        v_mov_b32 v{dst}, s15                          ; 32 + sig
        v_cndmask_b32 v{vTMPC}, v{vTMPC}, v{dst}, vcc
        v_and_b32 v{vTMPA}, 1, v{vTMPA}
        v_lshl_add_u32 v{vTMPA}, v{vTMPC}, 1, v{vTMPA}
        v_mul_u32_u24 v{dst}, 1152, v{vTMPB}
        v_lshl_add_u32 v{dst}, v{vTMPA}, 4, v{dst}
        """)
    e(f"""
    s_lshl_b32 s12, s{sRB}, 1
    s_lshr_b32 s13, s3, 1
    s_add_u32 s12, s12, s13
    s_lshl_b32 s12, s12, 7
    s_add_u32 s12, s12, {FX}
    v_lshlrev_b32 v{vFA}, 3, v{vM}
    v_add_u32 v{vFA}, s12, v{vFA}
    s_lshl_b32 s13, s{sFB}, 6
    s_add_u32 s13, s13, {FCS}
    v_mov_b32 v{vTMPA}, s13
    v_cmp_eq_u32 vcc, 9, v0
    s_nop 1
    v_cndmask_b32 v{vFA}, v{vFA}, v{vTMPA}, vcc
    """)
    poll_issue(e)
    e(f"s_lshl_b32 s12, s3, 6\ns_add_u32 s13, s12, 256\ns_lshl_b32 s14, s{sSIG}, 3\ns_add_u32 s15, s{sSIG}, 32")
    w4_voff(vW4A, "s12"); w4_voff(vW4B, "s13"); w4_voff(vW4C, "512")
    vGB = XF + 53
    e(f"""
    s_mul_i32 s{sW4B}, s{sXCD}, 663552
    s_lshl_b32 s12, s{sRB}, 3
    s_lshl_b32 s13, s3, 1
    s_add_u32 s{sST0}, s12, s13
    s_lshl_b32 s12, s{sST0}, 3
    s_add_u32 s12, s12, s{sXCD}
    s_mul_i32 s{sGB}, s12, 18432
    s_add_u32 s{sGB}, s{sGB}, {GBUF}
    v_and_b32 v{vTMPA}, 1, v{vQ}
    v_lshlrev_b32 v{vGB}, 8, v{vTMPA}
    v_lshl_add_u32 v{vGB}, v{vM}, 4, v{vGB}
    v_lshrrev_b32 v{vTMPA}, 1, v{vQ}
    v_lshl_add_u32 v{vGB}, v{vTMPA}, 3, v{vGB}
    s_lshl_b32 s12, s{sRB}, 3
    s_add_u32 s12, s12, s{sXCD}
    s_lshl_b32 s12, s12, 2
    s_add_u32 s12, s12, s3
    s_lshl_b32 s12, s12, 7
    s_add_u32 s{sFGB}, s12, {FG}
    s_lshl_b32 s12, s{sSIG}, 3
    s_add_u32 s{sFGO}, s{sFGB}, s12
    s_mul_i32 s15, s{sST0}, 18432
    s_add_u32 s15, s15, {X1BUF}
    s_lshl_b32 s100, s{sROT}, 10
    """)
    set_bases(e, RA)
    poll_check(e, "0x3ff")
    e.vm = []
    e.stamp(12)
    e(f"s_mov_b32 s{sT3}, s100\ns_mov_b32 s{sT4}, s15")
    def x1load(s):
        def f():
            e(f"s_add_u32 s12, s{sT3}, s{sT4}\ns_add_u32 s13, s12, 18432")
            for u in range(2):
                e.vmem(f"buffer_load_dwordx4 a[{72*u+4*s}:{72*u+4*s+3}], v{vL16}, {R(R_WS)}, s{12+u} offen sc1", f"x1{s}")
            e(f"s_add_u32 s{sT3}, s{sT3}, 1024\ns_cmp_eq_u32 s{sT3}, 18432\ns_cselect_b32 s{sT3}, 0, s{sT3}")
        return f
    for s in range(XPD): x1load(s)()
    SL = XF; CS = XF + 16
    def stat_loads():
        e(f"""
        s_lshl_b32 s12, s{sST0}, 11
        s_add_u32 s12, s12, {STBUF}
        v_lshlrev_b32 v{vTMPA}, 7, v{vM}
        v_lshl_add_u32 v{vTMPA}, v{vQ}, 5, v{vTMPA}
        v_mov_b32 v{vTMPC}, 0x7ff00000
        v_cmp_gt_u32 vcc, 48, v0
        s_lshl_b32 s13, s{sFB}, 10
        s_add_u32 s13, s13, {CSBUF}
        v_cndmask_b32 v{vTMPA}, v{vTMPC}, v{vTMPA}, vcc
        v_lshlrev_b32 v{vTMPB}, 2, v0
        v_cmp_gt_u32 vcc, 16, v0
        s_nop 1
        v_cndmask_b32 v{vTMPB}, v{vTMPC}, v{vTMPB}, vcc
        """)
        for u in range(2):
            e.vmem(f"buffer_load_dwordx4 v[{SL+8*u}:{SL+8*u+3}], v{vTMPA}, {R(R_WS)}, s12 offen offset:{2048*u} sc1", "stat")
            e.vmem(f"buffer_load_dwordx2 v[{SL+8*u+4}:{SL+8*u+5}], v{vTMPA}, {R(R_WS)}, s12 offen offset:{2048*u+16} sc1", "stat")
        for t in range(9):
            e.vmem(f"buffer_load_dword v{CS+t}, v{vTMPB}, {R(R_WS)}, s13 offen offset:{64*t} sc1", "stat")
    GK = XF + 28; RBF = XF + 36; RAF = XF + 44
    def stats_setup():
        e.wait_vm_now("stat")
        for u in range(2):
            b = SL + 8 * u
            e(f"""
            v_add_f32 v{b}, v{b}, v{b+2}
            v_add_f32 v{b+1}, v{b+1}, v{b+3}
            v_add_f32 v{b}, v{b}, v{b+4}
            v_add_f32 v{b+1}, v{b+1}, v{b+5}
            """)
            xq_reduce(e, [b, b + 1], b + 2)
            stats_finish(e, b, b + 1, b + 2, GK + 4 * u + 2, b + 3)
            e(f"""
            v_rcp_f32 v{b+3}, v{GK+4*u+2}
            v_cvt_pk_bf16_f32 v{RBF+4*u}, -v{b+2}, -v{b+2}
            v_mov_b32 v{RBF+4*u+1}, 0
            v_mov_b32 v{RBF+4*u+2}, 0
            v_mov_b32 v{RBF+4*u+3}, 0
            v_mul_f32 v{GK+4*u}, {hex(f32bits(GC0))}, v{b+3}
            v_mul_f32 v{b+4}, v{b+3}, v{b+3}
            v_mul_f32 v{b+4}, v{b+4}, v{b+3}
            v_mul_f32 v{GK+4*u+1}, {hex(f32bits(GC1))}, v{b+4}
            """)
        for r in range(8): e(f"v_mov_b32 v{RAF+r}, 0")
    KORD = [(0, 0), (0, 1)] + [(d, i) for d in (1, 2, 3) for i in (0, 1)] + [(0, 2), (0, 3)] + \
           [(d, i) for d in (1, 2, 3) for i in (2, 3)] + [(None, 16), (None, 17)]
    W4ADDR = {}
    for k in range(7): W4ADDR[k] = RA + 2048 + 9216 * k
    for k in range(7, 15): W4ADDR[k] = RB + 9216 * (k - 7)
    W4ADDR[15] = RS
    for k in (16, 17): W4ADDR[k] = RA + 2048 + 9216 * (k - 16)
    def kappa_to(sreg, k):
        d, i = KORD[k]
        if d is None:
            e(f"s_mov_b32 s{sreg}, {i}")
        else:
            e(f"s_add_u32 s{sreg}, s{sSIG}, {d}\ns_and_b32 s{sreg}, s{sreg}, 3\ns_lshl_b32 s{sreg}, s{sreg}, 2\ns_add_u32 s{sreg}, s{sreg}, {i}")
    def w4_dma_ops(ks_list, tag):
        ops = []
        for k in ks_list:
            def opA(k=k):
                kappa_to(12, k)
                e(f"""
                s_lshl_b32 s13, s3, 10
                s_add_u32 s13, s13, {W4ADDR[k]}
                s_mov_b32 m0, s13
                s_mul_i32 s12, s12, {32*1152}
                s_add_u32 s{sT3}, s12, s{sW4B}
                s_add_u32 s{sT4}, s13, 4096
                """)
                e.vmem(f"buffer_load_dwordx4 v{vW4A}, {R(R_W4)}, s{sT3} offen lds", tag)
            def opB(k=k):
                e(f"s_mov_b32 m0, s{sT4}\ns_nop 0")
                e.vmem(f"buffer_load_dwordx4 v{vW4B}, {R(R_W4)}, s{sT3} offen lds", tag)
            ops += [opA, opB]
        for n in range((len(ks_list) + 3) // 4):
            def opC(n=n):
                cand = [ks_list[min(4 * n + w, len(ks_list) - 1)] for w in range(4)]
                e(f"s_mov_b32 s13, {W4ADDR[cand[0]] + 8192}")
                kappa_to(12, cand[0])
                for w in range(1, 4):
                    if cand[w] == cand[w - 1]: continue
                    kappa_to(14, cand[w])
                    e(f"s_cmp_ge_u32 s3, {w}\ns_cselect_b32 s12, s14, s12\ns_cselect_b32 s13, {W4ADDR[cand[w]] + 8192}, s13")
                e(f"s_mov_b32 m0, s13\ns_mul_i32 s12, s12, {32*1152}\ns_add_u32 s12, s12, s{sW4B}")
                e.vmem(f"buffer_load_dwordx4 v{vW4C}, {R(R_W4)}, s12 offen lds", tag)
            ops.append(opC)
        return ops
    OWN = XF + 56
    def ownreg(phi, p, u): return (OWN if phi == 0 else TMP + 24) + 8 * p + 4 * u
    def gfrag(k, u):
        d, i = KORD[k]
        if d == 0:
            r = ownreg(i >> 1, i & 1, u)
            return f"v[{r}:{r+3}]"
        if k < 8: a = 144 + 8 * (k - 2)
        elif k < 16: a = 192 + 8 * (k - 10)
        else: a = 240 + 8 * (k - 16)
        return f"a[{a+4*u}:{a+4*u+3}]"
    CACC = [ACC, ACC + 32, ACC + 64]
    def gelu_fill(phi):
        acc = CACC[phi]
        fl = []
        if phi < 2:
            for p in range(2):
                for u in range(2):
                    regs = [acc + 8 * (2 * p + t) + 4 * u + r for t in range(2) for r in range(4)]
                    o = ownreg(phi, p, u)
                    fl += interleave([gelu_chain(x, TMP + 8 * u + i, GK + 4 * u, GK + 4 * u + 1, GK + 4 * u + 2) for i, x in enumerate(regs)])
                    for q_ in range(4):
                        fl.append(f"v_cvt_pk_bf16_f32 v{o+q_}, v{regs[2*q_]}, v{regs[2*q_+1]}")
                    def st(u=u, o=o, p=p):
                        e(f"s_lshl_b32 s12, s{sSIG}, 12\ns_add_u32 s12, s12, s{sGB}\ns_add_u32 s12, s12, {(2*phi+p)*1024 + u*8*18432}")
                        e.vmem(f"buffer_store_dwordx4 v[{o}:{o+3}], v{vL16}, {R(R_WS)}, s12 offen sc1", f"gst{phi}")
                    fl.append(st)
        else:
            regs = [acc + r for r in range(8)]
            o = TMP + 16
            fl += interleave([gelu_chain(x, TMP + i, GK + 4 * (i >> 2), GK + 4 * (i >> 2) + 1, GK + 4 * (i >> 2) + 2) for i, x in enumerate(regs)])
            for q_ in range(4):
                fl.append(f"v_cvt_pk_bf16_f32 v{o+q_}, v{regs[2*q_]}, v{regs[2*q_+1]}")
            def st():
                e(f"s_lshl_b32 s12, s{sSIG}, 9\ns_add_u32 s12, s12, s{sGB}\ns_add_u32 s12, s12, 16384\ns_add_u32 s13, s12, {8*18432}")
                e.vmem(f"buffer_store_dwordx2 v[{o}:{o+1}], v{vGB}, {R(R_WS)}, s12 offen sc1", "gst2")
                e.vmem(f"buffer_store_dwordx2 v[{o+2}:{o+3}], v{vGB}, {R(R_WS)}, s13 offen sc1", "gst2")
            fl.append(st)
        return fl
    def gflag(phi):
        def f():
            e.wait_vm_now(f"gst{phi}")
            e(f"s_add_u32 s12, s{sFGO}, {32*phi}")
            e.vmem(f"buffer_store_dwordx2 v[{vNON}:{vNON+1}], v{vL0}, {R(R_WS)}, s12 offen sc1", "flagst")
        return f
    def g_poll_issue(phi):
        def f():
            e(f"s_add_u32 s12, s{sFGB}, {32*phi}\nv_lshlrev_b32 v{vFA}, 3, v{vM}\nv_add_u32 v{vFA}, s12, v{vFA}")
            poll_issue(e)
        return f
    def g_loads(ks):
        ops = [lambda: poll_check(e, "0xf")]
        for k in ks:
            def f(k=k):
                kappa_to(12, k)
                e(f"s_lshl_b32 s12, s12, 10\ns_add_u32 s12, s12, s{sGB}\ns_add_u32 s13, s12, {8*18432}")
                for u in range(2):
                    e.vmem(f"buffer_load_dwordx4 {gfrag(k, u)}, v{vL16}, {R(R_WS)}, s{12+u} offen sc1", f"g{k}")
            ops.append(f)
        return ops
    def rank1(acc, tiles, cs0):
        for t in range(tiles):
            ra = RAF + 4 * (t % 2)
            e(f"v_mov_b32 v{ra}, v{CS+cs0+t}\ns_nop 1")
            for u in range(2):
                e(mf(acc + 8 * t + 4 * u, f"v[{ra}:{ra+3}]", f"v[{RBF+4*u}:{RBF+4*u+3}]", False))
    def cm(phi):
        return lambda s, t, f: [mf(CACC[phi] + 8 * t + 4 * u, f"v[{f}:{f+3}]", f"a[{72*u+4*s}:{72*u+4*s+3}]", s == 0) for u in range(2)]
    items = line_items(e, RA, cm(0), pre=lambda s: (lambda: e.wait_vm_now(f"x1{s}")))
    bt = [(4 * (s - XPD), 4 * (s - XPD) + 1, [x1load(s)]) for s in range(XPD, 18)]
    bt.append((4 * (18 - XPD), 4 * (18 - XPD) + 1, [stat_loads]))
    mfma_stream(e, items, [], dist=4, batches=bt)
    stats_setup()
    rank1(CACC[0], 4, 0)
    e.stamp(13)
    set_bases(e, RB)
    e.wait_all()
    e("s_barrier")
    items = line_items(e, RB, cm(1))
    mfma_stream(e, items, [], dist=4, batches=[
        (2, 46, gelu_fill(0)),
        (0, 58, single_dma_ops(e, list(range(16)), RS, "w4a") + single_dma_ops(e, [16, 17], RA, "w4a") + w4_dma_ops(list(range(0, 7)), "w4a")),
        (60, 61, [gflag(0)]),
    ])
    rank1(CACC[1], 4, 4)
    e.wait_vm_now("w4a")
    e("s_barrier")
    e.stamp(14)
    DA = 48
    def mfa(acc, a_, b_, first):
        c = "0" if first else f"a[{acc}:{acc+3}]"
        return f"v_mfma_f32_16x16x32_bf16 a[{acc}:{acc+3}], {a_}, {b_}, {c}"
    def d_item(k, tau, first_of_k, first=None):
        f = nextfrag()
        rd = gen2.tr_reads(f, vTR4, W4ADDR[k] + tau * 32, 2304)
        ms = [mfa(DA + 8 * tau + 4 * u, f"v[{f}:{f+3}]", gfrag(k, u), k == 0) for u in range(2)]
        pre = (lambda k=k: e.wait_vm_now(f"g{k}")) if first_of_k else None
        return (rd, ms, pre)
    e(f"v_add_u32 v{vCUR}, {RS}, v{vSG}")
    items = []
    for s in range(18):
        f = nextfrag()
        if s < 16:
            rd = [f"ds_read_b64_tr_b16 v[{f}:{f+1}], v{vCUR} offset:{s*1024}", f"ds_read_b64_tr_b16 v[{f+2}:{f+3}], v{vCUR} offset:{s*1024+256}"]
        else:
            rd = [f"ds_read_b64_tr_b16 v[{f}:{f+1}], v{vSG} offset:{RA+(s-16)*1024}", f"ds_read_b64_tr_b16 v[{f+2}:{f+3}], v{vSG} offset:{RA+(s-16)*1024+256}"]
        items.append((rd, cm(2)(s, 0, f), None))
    g1 = gelu_fill(1)
    h1 = len(g1) // 2
    w4b = w4_dma_ops(list(range(7, 15)), "w4b")
    mfma_stream(e, items, [], dist=4, batches=[
        (2, 18, g1[:h1]),
        (0, 18, w4b[:6]),
        (4, 5, [g_poll_issue(0)]),
        (14, 18, g_loads(list(range(2, 8)))),
    ])
    rank1(CACC[2], 1, 8)
    e("s_barrier")
    items = [d_item(k, tau, tau == 0) for k in range(0, 7) for tau in range(9)]
    mfma_stream(e, items, [], batches=[
        (0, 16, g1[h1:]),
        (16, 22, gelu_fill(2)),
        (0, 40, w4b[6:] + w4_dma_ops([15], "w4b")),
        (30, 31, [gflag(1)]),
        (36, 37, [gflag(2)]),
        (50, 51, [g_poll_issue(1)]),
    ])
    e.wait_vm_now("w4b")
    e("s_barrier")
    e.stamp(15)
    XR2 = TMP + 16
    def fin_prep():
        e(f"""
        s_lshl_b32 s12, s{sRB}, 2
        s_add_u32 s12, s12, s{sSIG}
        s_mul_i32 s12, s12, 9
        s_lshl_b32 s{sPB}, s12, 15
        s_lshl_b32 s13, s3, 10
        s_add_u32 s{sPB}, s{sPB}, s13
        s_add_u32 s{sPB}, s{sPB}, {PBUF}
        s_lshl_b32 s{sFPB}, s12, 8
        s_lshl_b32 s13, s3, 6
        s_add_u32 s{sFPB}, s{sFPB}, s13
        s_add_u32 s{sFPB}, s{sFPB}, {FP}
        s_lshl_b32 s12, s{sSIG}, 3
        s_add_u32 s12, s12, s{sXCD}
        s_lshl_b32 s12, s12, 9
        s_mul_i32 s13, s{sST0}, 18432
        s_add_u32 s12, s12, s13
        s_add_u32 s12, s12, {X1BUF}
        s_add_u32 s13, s12, 18432
        """)
        e.vmem(f"buffer_load_dwordx2 v[{XR2}:{XR2+1}], v{vGB}, {R(R_WS)}, s12 offen sc1", "xr")
        e.vmem(f"buffer_load_dwordx2 v[{XR2+2}:{XR2+3}], v{vGB}, {R(R_WS)}, s13 offen sc1", "xr")
        e(f"""
        s_add_u32 s12, s{sSIG}, 32
        s_lshl_b32 s12, s12, 9
        s_lshl_b32 s13, s{sRB}, 3
        s_add_u32 s13, s13, s{sXCD}
        s_mul_i32 s13, s13, 18432
        s_add_u32 s12, s12, s13
        s_add_u32 s12, s12, {X1BUF}
        """)
        e.vmem(f"buffer_load_dwordx2 v[{XR2+4}:{XR2+5}], v{vGB}, {R(R_WS)}, s12 offen sc1", "xr")
    KP2 = 12
    items = [d_item(k, tau, tau == 0) for k in range(7, KP2) for tau in range(9)]
    mfma_stream(e, items, [], batches=[
        (0, 12, g_loads(list(range(10, 16)))),
        (12, 20, w4_dma_ops([16, 17], "w4d") + [g_poll_issue(2)]),
        (20, 24, [fin_prep]),
        (30, 34, g_loads([16, 17])),
    ])
    e.wait_vm_now("w4d")
    e("s_barrier")
    def tsel(tau):
        if tau == 0: e("s_mov_b32 s12, 8")
        else: e(f"s_add_u32 s12, s{sXCD}, {tau}\ns_and_b32 s12, s12, 7")
    def p_epi(tau):
        o = ACC + 8 * (tau % 2)
        q_ = ACC + 16 + 4 * tau
        fl = [f"v_accvgpr_read_b32 v{o+r}, a{DA+8*tau+r}" for r in range(8)]
        fl += [f"v_cvt_pk_bf16_f32 v{q_+p}, v{o+2*p}, v{o+2*p+1}" for p in range(4)]
        def st():
            tsel(tau)
            e(f"s_lshl_b32 s12, s12, 3\ns_add_u32 s12, s12, s{sXCD}\ns_lshl_b32 s12, s12, 12\ns_add_u32 s12, s12, s{sPB}")
            e.vmem(f"buffer_store_dwordx4 v[{q_}:{q_+3}], v{vL16}, {R(R_WS)}, s12 offen sc1", f"p{tau}")
        fl.append(st)
        return fl
    def p_flag(tau):
        def f():
            e.wait_vm_now(f"p{tau}")
            tsel(tau)
            e(f"s_lshl_b32 s12, s12, 5\ns_add_u32 s12, s12, s{sXCD}\ns_lshl_b32 s12, s12, 3\ns_add_u32 s12, s12, s{sFPB}")
            e.vmem(f"buffer_store_dwordx2 v[{vNON}:{vNON+1}], v{vL0}, {R(R_WS)}, s12 offen sc1", "flagst")
        return f
    nk = 18 - KP2
    items = [d_item(k, tau, tau == 0) for tau in range(9) for k in range(KP2, 18)]
    bt = []
    FD = 5
    for tau in range(8):
        bt.append((nk * (tau + 1) + 2, nk * (tau + 2) - 1, p_epi(tau)))
        if tau + FD <= 8:
            bt.append((nk * (tau + FD) + nk - 1, nk * (tau + FD) + nk, [p_flag(tau)]))
    mfma_stream(e, items, [], batches=bt)
    for tau in range(9 - FD, 8):
        p_flag(tau)()
    def finish(vals, nvals, xr, outreg):
        for p in range(nvals // 2):
            x0, x1 = vals + 2 * p, vals + 2 * p + 1
            e(f"""
            v_cvt_pk_bf16_f32 v{x1}, v{x0}, v{x1}
            v_lshlrev_b32 v{x0}, 16, v{x1}
            v_and_b32 v{x1}, 0xffff0000, v{x1}
            v_lshlrev_b32 v{vTMPA}, 16, v{xr+p}
            v_and_b32 v{vTMPB}, 0xffff0000, v{xr+p}
            v_add_f32 v{x0}, v{x0}, v{vTMPA}
            v_add_f32 v{x1}, v{x1}, v{vTMPB}
            v_cvt_pk_bf16_f32 v{outreg+p}, v{x0}, v{x1}
            """)
    vOA = XF + 54
    PL = XF
    V = TMP
    e(f"""
    v_mul_u32_u24 v{vOA}, 1152, v{vM}
    v_lshl_add_u32 v{vOA}, v{vQ}, 3, v{vOA}
    v_lshlrev_b32 v{vFA}, 3, v{vM}
    s_add_u32 s12, s{sFPB}, {8*256}
    v_add_u32 v{vFA}, s12, v{vFA}
    s_lshr_b32 s12, s{sXCD}, 1
    s_cmp_lg_u32 s12, s3
    s_cbranch_scc1 L_no8
    """)
    save = list(e.vm)
    poll_issue(e)
    poll_check(e, "0xff")
    e(f"""
    s_and_b32 s12, s{sXCD}, 1
    s_lshl_b32 s12, s12, 3
    s_add_u32 s12, s12, s{sPB}
    s_add_u32 s12, s12, {8*32768}
    """)
    for src in range(8):
        e(f"buffer_load_dwordx2 v[{PL+2*src}:{PL+2*src+1}], v{vL16}, {R(R_WS)}, s12 offen sc1\ns_add_u32 s12, s12, 4096")
    e("s_waitcnt vmcnt(0)")
    for p in range(2):
        e(f"v_lshlrev_b32 v{V+2*p}, 16, v{PL+p}\nv_and_b32 v{V+2*p+1}, 0xffff0000, v{PL+p}")
    for src in range(1, 8):
        for p in range(2):
            e(f"""
            v_lshlrev_b32 v{vTMPA}, 16, v{PL+2*src+p}
            v_and_b32 v{vTMPB}, 0xffff0000, v{PL+2*src+p}
            v_add_f32 v{V+2*p}, v{V+2*p}, v{vTMPA}
            v_add_f32 v{V+2*p+1}, v{V+2*p+1}, v{vTMPB}
            """)
    finish(V, 4, XR2 + 4, TMP + 8)
    e(f"""
    s_lshl_b32 s12, s{sRB}, 3
    s_add_u32 s12, s12, s{sXCD}
    s_mul_i32 s12, s12, {16*1152}
    s_lshl_b32 s13, s{sSIG}, 5
    s_add_u32 s12, s12, s13
    s_add_u32 s12, s12, 1024
    buffer_store_dwordx2 v[{TMP+8}:{TMP+9}], v{vOA}, {R(R_OUT)}, s12 offen
    L_no8:
    """)
    e.vm = save
    e(f"""
    s_lshl_b32 s12, s{sXCD}, 8
    s_add_u32 s12, s12, s{sFPB}
    v_lshlrev_b32 v{vFA}, 3, v{vM}
    v_add_u32 v{vFA}, s12, v{vFA}
    s_lshl_b32 s15, 1, s{sXCD}
    s_xor_b32 s15, s15, 0xff
    """)
    poll_issue(e)
    for r in range(8):
        e(f"v_accvgpr_read_b32 v{V+r}, a{DA+64+r}")
    poll_check(e, "s15")
    e(f"s_lshl_b32 s13, s{sXCD}, 15\ns_add_u32 s13, s13, s{sPB}")
    for d in range(1, 8):
        e(f"s_add_u32 s12, s{sXCD}, {d}\ns_and_b32 s12, s12, 7\ns_lshl_b32 s12, s12, 12\ns_add_u32 s12, s12, s13")
        e.vmem(f"buffer_load_dwordx4 v[{PL+4*(d-1)}:{PL+4*(d-1)+3}], v{vL16}, {R(R_WS)}, s12 offen sc1", f"pl{d}")
    for d in range(1, 8):
        e.wait_vm_now(f"pl{d}")
        for p in range(4):
            r_ = PL + 4 * (d - 1) + p
            e(f"""
            v_lshlrev_b32 v{vTMPA}, 16, v{r_}
            v_and_b32 v{vTMPB}, 0xffff0000, v{r_}
            v_add_f32 v{V+2*p}, v{V+2*p}, v{vTMPA}
            v_add_f32 v{V+2*p+1}, v{V+2*p+1}, v{vTMPB}
            """)
    finish(V, 8, XR2, TMP + 8)
    e(f"""
    s_mul_i32 s12, s{sST0}, {16*1152}
    s_lshl_b32 s13, s{sSIG}, 8
    s_add_u32 s12, s12, s13
    s_lshl_b32 s13, s{sXCD}, 5
    s_add_u32 s12, s12, s13
    s_add_u32 s13, s12, {16*1152}
    buffer_store_dwordx2 v[{TMP+8}:{TMP+9}], v{vOA}, {R(R_OUT)}, s12 offen
    buffer_store_dwordx2 v[{TMP+10}:{TMP+11}], v{vOA}, {R(R_OUT)}, s13 offen
    """)
    if STAMPS:
        e(f"""
        s_memrealtime s[96:97]
        s_waitcnt lgkmcnt(0)
        s_lshl_b32 s12, s2, 2
        s_add_u32 s12, s12, s3
        s_lshl_b32 s12, s12, 8
        s_add_u32 s12, s12, {STAMPBUF}
        """)
        for i in range(17):
            e(f"""
            v_mov_b32 v{TMP+20}, s{64+2*i}
            v_mov_b32 v{TMP+21}, s{65+2*i}
            buffer_store_dwordx2 v[{TMP+20}:{TMP+21}], v{vL0}, {R(R_WS)}, s12 offen offset:{8*i}
            s_nop 1
            """)
    e("L_end:\ns_endpgm")
    return e

NW3A_EARLY = 8
NW1_EARLY = 4
HPD = 8
XPD = 5
NW3B_EARLY = 18

def build_text(code_size):
    e = gen()
    s = HEADER + f"; @launch grid=(256,1,1) block=(256,1,1) lds={LDS_TOTAL}\n"
    s += '.amdgcn_target "amdgcn-amd-amdhsa--gfx950"\n.text\n' + e.text().replace("CODE_SIZE", hex(code_size)) + kd(NAME, 512, 256)
    return s

def main(path):
    import subprocess
    s = build_text(0x1000)
    open(path, "w").write(s)
    r = subprocess.run(f"clang -x assembler -target amdgcn-amd-amdhsa -mcpu=gfx950 -c {path} -o _g4.o && llvm-readelf -S _g4.o", shell=True, capture_output=True, text=True)
    if r.returncode:
        print(r.stderr[:3000]); sys.exit(1)
    sz = int(re.search(r"\.text\s+PROGBITS\s+\w+\s+\w+\s+(\w+)", r.stdout).group(1), 16)
    print("code size", sz)
    s = build_text((sz - 128) & ~3)
    open(path, "w").write(s)

if __name__ == "__main__":
    STAMPS = "--stamps" in sys.argv
    main(sys.argv[1])
```

```python
from gen_common import *
import sys, re
import gen2
from gen2 import G, srd, R, xq_reduce, stats_finish, gelu_chain, interleave, cost, mfma_stream, mf

NAME = "standalone__mixer_s_mlp__sampling_kernel"
HBUF = 0
X1BUF = 0x120000
STBUF = 0x240000
CSBUF = 0x260000
FH = 0x270000
FX = 0x271000
FCS = 0x272000
FG = 0x274000
FP = 0x280000
GBUF = 0x300000
PBUF = 0xC00000
WSEND = 0x1600000
STAMPBUF = 0x1E00000

S_X, S_W1, S_W2, S_W3, S_W4, S_OUT, S_DBG, S_WS = 16, 18, 20, 22, 24, 26, 28, 30
R_X, R_W1, R_W2, R_W3, R_W4, R_WS, R_OUT, R_DBG = 32, 36, 40, 44, 48, 52, 56, 60
sXCD, sIDX, sRG, sJ, sSIG, sRB = 4, 5, 6, 7, 8, 9
sNON = 10
sFB, sW3C, sROT, sST0, sGB, sFGB, sFGO, sW4B, sPB, sFPB, sHROT, sT0, sT1, sT2, sT3, sT4 = range(16, 32)

vQ, vM, vZERO = 1, 2, 3
vDL = 4
vDS = 5
vLB = 6
vL16 = 10
vW4A, vW4B, vW4C = 11, 12, 13
vCUR = 14
vONE, vL0 = 18, 19
vFL, vFA, vNON = 20, 22, 24
vTR4 = 26
vTMPA, vTMPB, vTMPC = 29, 30, 31
XF, AF, ACC, TMP = 32, 104, 136, 208
vSG = 23

RA, RB, RS = 0, 73728, 147456
LDS_TOTAL = 163840
STAMPS = False
BOUND = "0x8000"

def poll_issue(e, tag="flag"):
    e.vmem(f"buffer_load_dwordx2 v[{vFL}:{vFL+1}], v{vFA}, {R(R_WS)}, 0 offen sc1", tag)

def poll_check(e, mask, tag="flag", sleep=1):
    L = e.label("poll")
    e.wait_vm_now(tag)
    e(f"""
    s_mov_b32 s14, 0
    {L}:
    v_cmp_ne_u64 vcc, v[{vFL}:{vFL+1}], v[{vNON}:{vNON+1}]
    s_and_b32 s12, vcc_lo, {mask}
    s_cbranch_scc0 {L}_ok
    s_add_u32 s14, s14, 1
    s_cmp_gt_u32 s14, {BOUND}
    s_cbranch_scc1 {L}_ok
    s_sleep {sleep}
    buffer_load_dwordx2 v[{vFL}:{vFL+1}], v{vFA}, {R(R_WS)}, 0 offen sc1
    s_waitcnt vmcnt(0)
    s_branch {L}
    {L}_ok:
    """)

def line_voff(e, pitch, w1swap):
    e(f"""
    v_lshrrev_b32 v{vTMPA}, 3, v0                  ; row
    v_and_b32 v{vTMPB}, 6, v{vTMPA}
    v_and_b32 v{vTMPC}, 7, v0
    v_xor_b32 v{vTMPB}, v{vTMPB}, v{vTMPC}         ; idx
    v_lshlrev_b32 v{vTMPB}, 2, v{vTMPB}
    v_mov_b32 v{vTMPC}, 0x75643120
    v_lshrrev_b32 v{vTMPB}, v{vTMPB}, v{vTMPC}
    v_and_b32 v{vTMPB}, 7, v{vTMPB}                ; piece
    """)
    if w1swap:
        e(f"""
        v_and_b32 v{vTMPC}, 4, v{vTMPA}
        v_add_u32 v{vTMPA}, v{vTMPA}, v{vTMPC}
        """)
    e(f"""
    v_mul_u32_u24 v{vDL}, {pitch}, v{vTMPA}
    v_lshl_add_u32 v{vDL}, v{vTMPB}, 4, v{vDL}
    """)

def line_dma_ops(e, rsrc, pitch, region, scol, srot, tag, w1swap=False, issue_rot=None):
    ops = []
    for n in range(18):
        def op(n=n):
            if issue_rot is None:
                e(f"s_mul_i32 s12, s3, 18\ns_add_u32 s12, s12, {n}")
            else:
                e(f"""
                s_add_u32 s12, s{issue_rot}, {n}
                s_sub_u32 s13, s12, 18
                s_cmp_ge_u32 s12, 18
                s_cselect_b32 s12, s13, s12
                s_mul_i32 s13, s3, 18
                s_add_u32 s12, s12, s13
                """)
            e(f"""
            s_lshl_b32 s13, s12, 10
            s_add_u32 s13, s13, {region}
            s_mov_b32 m0, s13
            """)
            if srot is not None:
                e(f"""
                s_lshl_b32 s13, s{srot}, 2
                s_add_u32 s12, s12, s13
                s_sub_u32 s13, s12, 72
                s_cmp_ge_u32 s12, 72
                s_cselect_b32 s12, s13, s12
                """)
            if w1swap:
                e(f"""
                s_and_b32 s13, s12, 1
                s_lshl_b32 s12, s12, 1
                s_sub_u32 s12, s12, s13
                s_mul_i32 s12, s12, {4*pitch}
                """)
            else:
                e(f"s_mul_i32 s12, s12, {8*pitch}")
            e(f"s_add_u32 s12, s12, s{scol}")
            e.vmem(f"buffer_load_dwordx4 v{vDL}, {R(rsrc)}, s12 offen lds", tag)
        ops.append(op)
    return ops

def single_dma_ops(e, slots, ldsbase, tag):
    ops = []
    s0, cnt = slots[0], len(slots)
    for n in range((cnt + 3) // 4):
        def op(n=n):
            e(f"""
            s_add_u32 s12, s3, {4*n}
            s_min_u32 s12, s12, {cnt-1}
            s_lshl_b32 s13, s12, 10
            s_add_u32 s13, s13, {ldsbase}
            s_mov_b32 m0, s13
            s_add_u32 s12, s12, s{sROT}
            s_add_u32 s12, s12, {s0}
            s_sub_u32 s13, s12, 18
            s_cmp_ge_u32 s12, 18
            s_cselect_b32 s12, s13, s12
            s_mul_i32 s12, s12, {32*9216}
            """)
            e.vmem(f"buffer_load_dwordx4 v{vDS}, {R(R_W3)}, s12 offen lds", tag)
        ops.append(op)
    return ops

class Ring:
    cnt = 0
def nextfrag():
    f = AF + 4 * (Ring.cnt % 8); Ring.cnt += 1
    return f

def line_items(e, region, mk_mfmas, pre=None, tiles=range(4)):
    items = []
    for s in range(18):
        for t in tiles:
            f = nextfrag()
            hi = s >= 9
            off = (s - 9 * hi) * 4096
            b = (vCUR if not hi else vLB2) + t
            rd = [f"ds_read_b64_tr_b16 v[{f}:{f+1}], v{b} offset:{off}",
                  f"ds_read_b64_tr_b16 v[{f+2}:{f+3}], v{b} offset:{off+1024}"]
            items.append((rd, mk_mfmas(s, t, f), pre(s) if (pre and t == tiles[0]) else None))
    return items
vLB2 = TMP + 44

def set_bases(e, region):
    for t in range(4):
        e(f"v_add_u32 v{vCUR+t}, {region}, v{vLB+t}")
        e(f"v_add_u32 v{vLB2+t}, {region+36864}, v{vLB+t}")

def gen():
    gen2.STAMPS = STAMPS
    Ring.cnt = 0
    e = G()
    e.lines.append(kstart(NAME))
    e("s_cmp_ge_u32 s2, 256\ns_cbranch_scc1 L_end")
    e.stamp(0)
    e(f"""
    s_load_dwordx16 s[16:31], s[0:1], 0
    s_memrealtime s[{sNON}:{sNON+1}]
    s_getpc_b64 s[98:99]
    v_lshrrev_b32 v1, 6, v0
    v_and_b32 v0, 63, v0
    s_nop 0
    v_readfirstlane_b32 s3, v1
    v_lshrrev_b32 v{vQ}, 4, v0
    v_and_b32 v{vM}, 15, v0
    v_mov_b32 v{vZERO}, 0
    v_lshlrev_b32 v{vL16}, 4, v0
    v_mov_b32 v{vONE}, 0x3f803f80
    s_and_b32 s{sXCD}, s2, 7
    s_lshr_b32 s{sIDX}, s2, 3
    s_cmp_lg_u32 s{sIDX}, 0
    s_cbranch_scc1 L_nopf
    v_lshlrev_b32 v{vTMPA}, 7, v0
    s_lshl_b32 s12, s3, 13
    v_add_u32 v{vTMPA}, s12, v{vTMPA}
    v_add_u32 v{vTMPB}, 0x8000, v{vTMPA}
    v_min_u32 v{vTMPA}, CODE_SIZE, v{vTMPA}
    v_min_u32 v{vTMPB}, CODE_SIZE, v{vTMPB}
    global_load_dword v{TMP+43}, v{vTMPA}, s[98:99]
    global_load_dword v{TMP+42}, v{vTMPB}, s[98:99]
    L_nopf:
    s_and_b32 s{sSIG}, s{sIDX}, 3
    s_lshr_b32 s{sRB}, s{sIDX}, 2
    s_lshl_b32 s{sRG}, s{sXCD}, 1
    s_cmp_ge_u32 s{sIDX}, 9
    s_cselect_b32 s12, 1, 0
    s_cselect_b32 s13, 9, 0
    s_add_u32 s{sRG}, s{sRG}, s12
    s_sub_u32 s{sJ}, s{sIDX}, s13
    v_cmp_eq_u32 vcc, 0, v0
    v_mov_b32 v{vL0}, 0x7ff00000
    v_lshrrev_b32 v{vTMPA}, 3, v0
    v_cndmask_b32 v{vL0}, v{vL0}, v{vZERO}, vcc
    v_lshrrev_b32 v{vTMPB}, 1, v{vTMPA}
    v_and_b32 v{vTMPC}, 7, v0
    v_xor_b32 v{vTMPB}, v{vTMPB}, v{vTMPC}
    v_mul_u32_u24 v{TMP}, 1152, v{vTMPA}
    v_lshl_add_u32 v{TMP}, v{vTMPB}, 4, v{TMP}
    v_xor_b32 v{TMP+1}, 64, v{TMP}
    v_add_u32 v{TMP+1}, {8*1152}, v{TMP+1}
    """)
    line_voff(e, 1152, True)
    e("s_waitcnt lgkmcnt(0)")
    srd(e, R_X, S_X, 1024 * 1152)
    srd(e, R_W1, S_W1, 576 * 1152)
    e(f"""
    s_cmp_ge_u32 s{sIDX}, 18
    s_cbranch_scc1 L_skipx
    s_lshl_b32 s12, s{sRG}, 6
    s_lshl_b32 s13, s3, 4
    s_add_u32 s12, s12, s13
    s_mul_i32 s15, s12, 1152
    s_mul_i32 s14, s3, 18432
    s_add_u32 s14, s14, {RB}
    s_mov_b32 s100, s{sJ}
    """)
    for n in range(9):
        e(f"""
        s_lshl_b32 s12, s100, 11
        s_add_u32 s12, s12, s14
        s_mov_b32 m0, s12
        s_lshl_b32 s13, s100, 7
        s_add_u32 s13, s13, s15
        s_add_u32 s12, s12, 1024
        buffer_load_dwordx4 v{TMP}, {R(R_X)}, s13 offen lds
        s_mov_b32 m0, s12
        s_add_u32 s100, s100, 1
        s_cmp_eq_u32 s100, 9
        buffer_load_dwordx4 v{TMP+1}, {R(R_X)}, s13 offen lds
        s_cselect_b32 s100, 0, s100
        """)
    e(f"s_lshl_b32 s15, s{sJ}, 7\ns_mov_b32 s101, s{sRG}")
    e.vm = ["x"] * 18
    w1ops = line_dma_ops(e, R_W1, 1152, RA, 15, None, "w1", w1swap=True, issue_rot=101)
    for op in w1ops[:NW1_EARLY]: op()
    w1ops = w1ops[NW1_EARLY:]
    vm_front = list(e.vm)
    e("L_skipx:")
    srd(e, R_W2, S_W2, 576 * 1152)
    srd(e, R_W3, S_W3, 576 * 9216)
    srd(e, R_W4, S_W4, 4608 * 1152)
    srd(e, R_WS, S_WS, 0x10000000 if STAMPS else WSEND)
    srd(e, R_OUT, S_OUT, 1024 * 1152)
    srd(e, R_DBG, S_DBG, 256)
    e.stamp(1)
    e(f"""
    s_or_b32 s12, s2, s3
    s_cmp_lg_u32 s12, 0
    s_cbranch_scc1 L_nononce
    s_or_b32 s{sNON+1}, s{sNON+1}, 0x40000000
    v_mov_b32 v{vNON}, s{sNON}
    v_mov_b32 v{vNON+1}, s{sNON+1}
    buffer_store_dwordx2 v[{vNON}:{vNON+1}], v{vL0}, {R(R_DBG)}, 0 offen sc1
    L_nononce:
    """)
    e(f"""
    v_lshrrev_b32 v{vTMPA}, 5, v0
    v_lshlrev_b32 v{vTMPA}, 4, v{vTMPA}
    v_bfe_u32 v{vTMPB}, v0, 4, 1
    v_lshl_add_u32 v{vTMPA}, v{vTMPB}, 2, v{vTMPA}
    v_bfe_u32 v{vTMPB}, v0, 2, 2
    v_add_u32 v{vTMPA}, v{vTMPA}, v{vTMPB}             ; row (t=0)
    v_and_b32 v{vTMPB}, 3, v0
    v_lshlrev_b32 v{vTMPB}, 3, v{vTMPB}                ; c*8
    v_mul_u32_u24 v{vTR4}, 288, v{vTMPA}
    v_add_u32 v{vTR4}, v{vTR4}, v{vTMPB}
    v_add_u32 v{vTR4+1}, 0x10000, v{vTR4}
    v_add_u32 v{vTR4+2}, 0x20000, v{vTR4}
    v_lshl_add_u32 v{vSG}, v{vTMPA}, 5, v{vTMPB}
    v_lshl_add_u32 v{vLB}, v{vTMPA}, 7, v{vTMPB}       ; row*128 + c*8
    v_bfe_u32 v{vTMPC}, v{vTMPA}, 1, 2                 ; kappa
    v_lshl_add_u32 v{vLB}, v{vTMPC}, 5, v{vLB}         ; tau=0
    v_xor_b32 v{vLB+1}, 32, v{vLB}
    v_xor_b32 v{vLB+2}, 64, v{vLB}
    v_xor_b32 v{vLB+3}, 96, v{vLB}
    s_lshl_b32 s{sFB}, s{sXCD}, 2
    s_add_u32 s{sFB}, s{sFB}, s{sSIG}
    s_mul_i32 s{sW3C}, s{sXCD}, 1152
    s_lshl_b32 s12, s{sSIG}, 5
    s_add_u32 s12, s12, s{sW3C}
    s_add_u32 s12, s12, 1024
    s_lshl_b32 s13, s{sSIG}, 8
    s_add_u32 s{sW3C}, s{sW3C}, s13
    s_mul_i32 s{sROT}, s{sSIG}, 9
    s_lshr_b32 s{sROT}, s{sROT}, 1      ; 0,4,9,13
    v_lshrrev_b32 v{vTMPA}, 1, v0
    v_mul_u32_u24 v{vDS}, 9216, v{vTMPA}
    v_and_b32 v{vTMPA}, 1, v0
    v_lshl_add_u32 v{vDS}, v{vTMPA}, 4, v{vDS}
    v_add_u32 v{vDS}, s12, v{vDS}
    s_cmp_ge_u32 s{sIDX}, 18
    s_cbranch_scc1 L_idle
    """)
    def nonce_load():
        e.vmem(f"buffer_load_dwordx2 v[{vNON}:{vNON+1}], v{vZERO}, {R(R_DBG)}, 0 offen sc1", "nonce")
    def nonce_check():
        L = e.label("non")
        e(f"""
        s_mov_b32 s14, 0
        {L}:
        v_cmp_ne_u32 vcc, 0, v{vNON+1}
        s_cbranch_vccnz {L}_ok
        s_add_u32 s14, s14, 1
        s_cmp_gt_u32 s14, {BOUND}
        s_cbranch_scc1 {L}_ok
        s_sleep 1
        buffer_load_dwordx2 v[{vNON}:{vNON+1}], v{vZERO}, {R(R_DBG)}, 0 offen sc1
        s_waitcnt vmcnt(0)
        s_branch {L}
        {L}_ok:
        """)
    e.vm = vm_front
    XA = TMP + 2
    XR = TMP + 32
    e(f"""
    v_lshrrev_b32 v{vTMPA}, 1, v{vM}
    v_xor_b32 v{vTMPB}, v{vTMPA}, v{vQ}
    v_lshlrev_b32 v{XA}, 7, v{vM}
    v_add_u32 v{XA}, s14, v{XA}
    v_and_b32 v{vTMPC}, 2, v{vQ}
    v_xor_b32 v{vTMPC}, v{vTMPC}, v{vTMPA}
    v_lshl_add_u32 v{XA+2}, v{vTMPC}, 4, v{XA}
    v_and_b32 v{vTMPC}, 1, v{vQ}
    v_lshl_add_u32 v{XA+2}, v{vTMPC}, 3, v{XA+2}
    s_lshl_b32 s12, s{sJ}, 11
    v_add_u32 v{XA+2}, s12, v{XA+2}
    v_xor_b32 v{XA+3}, 16, v{XA+2}
    v_xor_b32 v{XA+4}, 64, v{XA+2}
    v_xor_b32 v{XA+5}, 80, v{XA+2}
    v_lshl_add_u32 v{XA}, v{vTMPB}, 4, v{XA}
    v_xor_b32 v{XA+1}, 64, v{XA}
    s_lshl_b32 s{sHROT}, s{sJ}, 1
    """)
    e.wait_vm_now("x")
    e.stamp(2)
    for s in range(18):
        e(f"ds_read_b128 v[{XF+4*s}:{XF+4*s+3}], v{XA+(s&1)} offset:{(s>>1)*2048}")
        if s == 11: e("s_waitcnt lgkmcnt(8)")
    S0, S1 = TMP + 10, TMP + 11
    e(f"v_mov_b32 v{S0}, 0\nv_mov_b32 v{S1}, 0")
    def dots(s):
        for k in range(4): e(f"v_dot2_f32_bf16 v{S0}, v{XF+4*s+k}, v{vONE}, v{S0}")
        for k in range(4): e(f"v_dot2_f32_bf16 v{S1}, v{XF+4*s+k}, v{XF+4*s+k}, v{S1}")
        if s % 2 == 0 and w1ops: w1ops.pop(0)()
    for s in range(4): dots(s)
    e("s_waitcnt lgkmcnt(6)")
    for i in range(4):
        e(f"ds_read_b64 v[{XR+2*i}:{XR+2*i+1}], v{XA+2+i}")
    for s in range(4, 8): dots(s)
    e("s_waitcnt lgkmcnt(0)")
    for s in range(8, 18): dots(s)
    e("s_nop 2")
    xq_reduce(e, [S0, S1], TMP + 12)
    stats_finish(e, S0, S1, TMP + 12, TMP + 13, TMP + 14)
    e(f"""
    v_rcp_f32 v{TMP+14}, v{TMP+13}
    s_nop 0
    v_mov_b32 v{TMP+15}, v{TMP+14}
    v_mul_f32 v{TMP+16}, -v{TMP+12}, v{TMP+14}
    v_mov_b32 v{TMP+17}, v{TMP+16}
    """)
    w2ops = None
    for r in range(72):
        t = TMP + 18 + 2 * (r % 4)
        e(f"""
        v_lshlrev_b32 v{t}, 16, v{XF+r}
        v_and_b32 v{t+1}, 0xffff0000, v{XF+r}
        v_pk_fma_f32 v[{t}:{t+1}], v[{t}:{t+1}], v[{TMP+14}:{TMP+15}], v[{TMP+16}:{TMP+17}]
        v_cvt_pk_bf16_f32 v{XF+r}, v{t}, v{t+1}
        """)
        if r % 4 == 3 and w1ops:
            w1ops.pop(0)()
        elif r % 8 == 7 and not w1ops:
            if w2ops is None:
                nonce_load()
                line_voff(e, 1152, False)
                w2ops = line_dma_ops(e, R_W2, 1152, RB, 15, sHROT, "w2")
            else:
                w2ops.pop(0)()
    assert not w1ops
    e.stamp(3)
    HA = TMP + 2
    e(f"""
    s_lshl_b32 s12, s{sRG}, 2
    s_and_b32 s13, s3, 2
    s_add_u32 s12, s12, s13
    s_mul_i32 s12, s12, 18432
    s_lshl_b32 s13, s{sJ}, 11
    s_add_u32 s{sT0}, s12, s13          ; (4rg + (w&2))*18432 + 8j*256
    s_and_b32 s13, s3, 1
    s_lshl_b32 s13, s13, 4
    v_add_u32 v{TMP+4}, s13, v{vM}      ; m32
    v_lshrrev_b32 v{TMP+5}, 1, v{vQ}
    """)
    for p in range(2):
        e(f"""
        s_lshl_b32 s12, s{sJ}, 2
        s_add_u32 s12, s12, {2*p}
        v_add_u32 v{vTMPA}, s12, v{TMP+5}              ; G
        v_mul_u32_u24 v{vTMPA}, 57, v{vTMPA}
        v_lshrrev_b32 v{vTMPA}, 9, v{vTMPA}            ; grp
        v_lshlrev_b32 v{vTMPA}, 3, v{vTMPA}
        v_mov_b32 v{vTMPB}, 0x00040103
        v_lshrrev_b32 v{vTMPA}, v{vTMPA}, v{vTMPB}
        v_and_b32 v{vTMPA}, 7, v{vTMPA}
        v_add_u32 v{vTMPA}, v{vTMPA}, v{TMP+4}
        v_subrev_u32 v{vTMPA}, 2, v{vTMPA}             ; dest
        v_cmp_gt_u32 s[{96+2*p}:{97+2*p}], 32, v{vTMPA}
        v_bfe_u32 v{vTMPB}, v{vTMPA}, 4, 1
        v_and_b32 v{vTMPA}, 15, v{vTMPA}
        v_mul_u32_u24 v{vTMPB}, 18432, v{vTMPB}
        v_lshl_add_u32 v{vTMPB}, v{vTMPA}, 4, v{vTMPB}
        v_lshl_add_u32 v{HA+p}, v{vQ}, 8, v{vTMPB}
        """)
    set_bases(e, RA)
    e.wait_vm_now("w1")
    e("s_barrier")
    e.stamp(4)
    abm = lambda s, t, f: [mf(ACC + 4 * t, f"v[{f}:{f+3}]", f"v[{XF+4*s}:{XF+4*s+3}]", s == 0)]
    mfma_stream(e, line_items(e, RA, abm), [], dist=6, batches=[(0, 60, w2ops)])
    e.stamp(5)
    e(f"""
    v_mov_b32 v{TMP+4}, {hex(f32bits(GC0))}
    v_mov_b32 v{TMP+5}, {hex(f32bits(GC1))}
    v_mov_b32 v{TMP+6}, 1.0
    s_add_u32 s12, s{sT0}, {HBUF}
    s_nop 4
    """)
    OUTR = XF
    for half in range(2):
        for p in range(4 * half, 4 * half + 4):
            x0, x1 = ACC + 2 * p, ACC + 2 * p + 1
            e(f"""
            v_cvt_pk_bf16_f32 v{x1}, v{x0}, v{x1}
            v_lshlrev_b32 v{x0}, 16, v{x1}
            v_and_b32 v{x1}, 0xffff0000, v{x1}
            """)
        for ins in interleave([gelu_chain(ACC + 8 * half + i, TMP + 12 + i, TMP + 4, TMP + 5, TMP + 6) for i in range(8)]): e(ins)
        for p in range(4 * half, 4 * half + 4):
            e(f"v_cvt_pk_bf16_f32 v{OUTR+p}, v{ACC+2*p}, v{ACC+2*p+1}")
        for p in range(4 * half, 4 * half + 4):
            e(f"v_cndmask_b32 v{OUTR+p}, 0, v{OUTR+p}, s[{96+2*half}:{97+2*half}]")
        e.vmem(f"buffer_store_dwordx4 v[{OUTR+4*half}:{OUTR+4*half+3}], v{HA+half}, {R(R_WS)}, s12 offen offset:{1024*half} sc1", "st")
    e.stamp(6)
    line_voff(e, 9216, False)
    set_bases(e, RB)
    e(f"""
    s_lshl_b32 s12, s{sRG}, 7
    s_lshl_b32 s{sT1}, s{sJ}, 3
    s_add_u32 s{sT1}, s{sT1}, s12       ; rg*128 + j*8
    s_add_u32 s12, s12, {FH}
    v_lshlrev_b32 v{vFA}, 3, v{vM}
    v_add_u32 v{vFA}, s12, v{vFA}
    s_add_u32 s13, s{sT1}, {FH}
    """)
    e.wait_all()
    nonce_check()
    e(f"""
    s_barrier
    s_cmp_lg_u32 s3, 0
    s_cbranch_scc1 L_nofh
    buffer_store_dwordx2 v[{vNON}:{vNON+1}], v{vL0}, {R(R_WS)}, s13 offen sc1
    L_nofh:
    """)
    e.stamp(7)
    w3a = line_dma_ops(e, R_W3, 9216, RA, sW3C, sROT, "w3a")
    for op in w3a[:NW3A_EARLY]: op()
    poll_issue(e)
    poll_check(e, "0x1ff")
    e.vm = []
    e.stamp(8)
    e(f"""
    s_lshl_b32 s12, s{sRG}, 2
    s_add_u32 s12, s12, s3
    s_mul_i32 s15, s12, 18432
    s_add_u32 s15, s15, {HBUF}
    s_lshl_b32 s14, s{sHROT}, 10
    """)
    e(f"s_mov_b32 s{sT3}, s14\ns_mov_b32 s{sT4}, s15")
    def hload(s):
        def f():
            e(f"s_add_u32 s12, s{sT3}, s{sT4}")
            for i in range(2):
                e.vmem(f"buffer_load_dwordx4 v[{XF+4*(s+i)}:{XF+4*(s+i)+3}], v{vL16}, {R(R_WS)}, s12 offen offset:{1024*i} sc1", f"h{s+i}")
            e(f"s_add_u32 s{sT3}, s{sT3}, 2048\ns_cmp_eq_u32 s{sT3}, 18432\ns_cselect_b32 s{sT3}, 0, s{sT3}")
        return f
    for s in range(0, HPD, 2): hload(s)()
    bt = [(4 * (s - HPD), 4 * (s - HPD) + 1, [hload(s)]) for s in range(HPD, 18, 2)]
    bt.append((4 * (18 - HPD), 72, w3a[NW3A_EARLY:]))
    mfma_stream(e, line_items(e, RB, abm, pre=lambda s: (lambda: e.wait_vm_now(f"h{s}"))), [], dist=6, batches=bt)
    e.stamp(9)
    e(f"""
    s_and_b32 s13, s3, 1
    s_mul_i32 s13, s13, 18432
    s_add_u32 s12, s{sT0}, s13
    s_add_u32 s12, s12, {X1BUF}
    v_mov_b32 v{S0}, 0
    v_mov_b32 v{S1}, 0
    s_nop 3
    """)
    for half in range(2):
        for p in range(4 * half, 4 * half + 4):
            x0, x1 = ACC + 2 * p, ACC + 2 * p + 1
            e(f"""
            v_cvt_pk_bf16_f32 v{x1}, v{x0}, v{x1}
            v_lshlrev_b32 v{x0}, 16, v{x1}
            v_and_b32 v{x1}, 0xffff0000, v{x1}
            v_lshlrev_b32 v{TMP+4}, 16, v{XR+p}
            v_and_b32 v{TMP+5}, 0xffff0000, v{XR+p}
            v_add_f32 v{x0}, v{x0}, v{TMP+4}
            v_add_f32 v{x1}, v{x1}, v{TMP+5}
            v_cvt_pk_bf16_f32 v{OUTR+p}, v{x0}, v{x1}
            """)
        e.vmem(f"buffer_store_dwordx4 v[{OUTR+4*half}:{OUTR+4*half+3}], v{vL16}, {R(R_WS)}, s12 offen offset:{1024*half} sc1", "st")
    for p in range(8): e(f"v_dot2_f32_bf16 v{S0}, v{OUTR+p}, v{vONE}, v{S0}")
    for p in range(8): e(f"v_dot2_f32_bf16 v{S1}, v{OUTR+p}, v{OUTR+p}, v{S1}")
    e(f"""
    s_mul_i32 s12, s{sJ}, 43
    s_lshr_b32 s12, s12, 7
    s_add_u32 s12, s12, s{sJ}
    s_lshl_b32 s12, s12, 3              ; (j + j/3)*8
    s_lshl_b32 s13, s{sRG}, 6
    s_lshl_b32 s14, s3, 4
    s_add_u32 s13, s13, s14
    s_lshl_b32 s13, s13, 7
    s_add_u32 s12, s12, s13
    s_add_u32 s12, s12, {STBUF}
    v_lshlrev_b32 v{vTMPA}, 7, v0
    v_cmp_gt_u32 vcc, 16, v0
    v_mov_b32 v{vTMPB}, 0x7ff00000
    """)
    xq_reduce(e, [S0, S1], TMP + 4)
    e(f"v_cndmask_b32 v{vTMPA}, v{vTMPB}, v{vTMPA}, vcc")
    e.vmem(f"buffer_store_dwordx2 v[{S0}:{S1}], v{vTMPA}, {R(R_WS)}, s12 offen sc1", "st")
    e.stamp(10)
    e(f"s_add_u32 s13, s{sT1}, {FX}\ns_add_u32 s{sT2}, s{sW3C}, 128")
    e.wait_all()
    e(f"""
    s_barrier
    s_cmp_lg_u32 s3, 0
    s_cbranch_scc1 L_nofx
    buffer_store_dwordx2 v[{vNON}:{vNON+1}], v{vL0}, {R(R_WS)}, s13 offen sc1
    L_nofx:
    """)
    w3b = line_dma_ops(e, R_W3, 9216, RB, sT2, sROT, "w3b")
    for op in w3b[:NW3B_EARLY]: op()
    e("s_branch L_cstart")
    e("L_idle:")
    e.vm = []
    e(f"""
    v_lshlrev_b32 v{vTMPA}, 7, v0
    s_sub_u32 s14, s{sIDX}, 18
    s_lshl_b32 s14, s14, 2
    s_add_u32 s14, s14, s3
    s_mul_i32 s15, s{sXCD}, 10
    s_add_u32 s15, s15, s14
    """)
    tcnt = 0
    for rs in (R_W1, R_W2):
        for r_ in range(2):
            e(f"""
            s_add_u32 s12, s15, {56*r_}
            s_sub_u32 s13, s12, 81
            s_cmp_ge_u32 s12, 81
            s_cselect_b32 s12, s13, s12
            s_sub_u32 s13, s12, 81
            s_cmp_ge_u32 s12, 81
            s_cselect_b32 s12, s13, s12
            s_lshl_b32 s12, s12, 13
            """)
            if r_ == 1:
                L = e.label("tch")
                e(f"s_cmp_ge_u32 s14, 25\ns_cbranch_scc1 {L}")
            e(f"buffer_load_dword v{TMP+tcnt}, v{vTMPA}, {R(rs)}, s12 offen")
            if r_ == 1: e(f"{L}:")
            tcnt += 1
    for r_ in range(2):
        e(f"""
        s_add_u32 s12, s14, {56*r_}
        s_lshl_b32 s12, s12, 6
        v_add_u32 v{vTMPB}, s12, v0
        v_mul_u32_u24 v{vTMPC}, 7282, v{vTMPB}
        v_lshrrev_b32 v{vTMPC}, 16, v{vTMPC}           ; row
        v_mul_u32_u24 v{TMP+20}, {9216-9*128}, v{vTMPC}
        v_lshl_add_u32 v{vTMPB}, v{vTMPB}, 7, v{TMP+20}
        s_mul_i32 s13, s{sXCD}, 1152
        buffer_load_dword v{TMP+tcnt}, v{vTMPB}, {R(R_W3)}, s13 offen
        """)
        tcnt += 1
    e(f"""
    s_lshl_b32 s12, s14, 13
    v_add_u32 v{vTMPB}, s12, v{vTMPA}
    v_add_u32 v{vTMPC}, {56*8192}, v{vTMPB}
    v_min_u32 v{vTMPC}, {663552-128}, v{vTMPC}
    s_mul_i32 s13, s{sXCD}, 663552
    buffer_load_dword v{TMP+tcnt}, v{vTMPB}, {R(R_W4)}, s13 offen
    buffer_load_dword v{TMP+tcnt+1}, v{vTMPC}, {R(R_W4)}, s13 offen
    """)
    line_voff(e, 9216, False)
    e(f"""
    s_add_u32 s{sT2}, s{sW3C}, 128
    s_cmp_lt_u32 s{sIDX}, 28
    s_cbranch_scc1 L_idle2
    """)
    for op in single_dma_ops(e, [16, 17], RA, "w"): op()
    e(f"""
    s_waitcnt vmcnt(0)
    s_barrier
    ds_read_b64_tr_b16 v[{XF}:{XF+1}], v{vSG} offset:{RA}
    ds_read_b64_tr_b16 v[{XF+2}:{XF+3}], v{vSG} offset:{RA+256}
    ds_read_b64_tr_b16 v[{XF+4}:{XF+5}], v{vSG} offset:{RA+1024}
    ds_read_b64_tr_b16 v[{XF+6}:{XF+7}], v{vSG} offset:{RA+1024+256}
    s_waitcnt lgkmcnt(0)
    s_barrier
    L_idle2:
    s_mul_i32 s101, s{sRB}, 5
    s_sub_u32 s101, s101, 20
    """)
    e.vm = []
    nonce_load()
    for op in line_dma_ops(e, R_W3, 9216, RA, sW3C, sROT, "w3", issue_rot=101): op()
    for op in line_dma_ops(e, R_W3, 9216, RB, sT2, sROT, "w3", issue_rot=101)[:NW3B_EARLY if False else 18]: op()
    for op in single_dma_ops(e, list(range(16)), RS, "w3"): op()
    e("s_waitcnt vmcnt(0)")
    nonce_check()
    e(f"""
    s_barrier
    s_cmp_lt_u32 s{sIDX}, 28
    s_cbranch_scc1 L_cjoin
    s_lshr_b32 s12, s3, 1
    s_mul_i32 s12, s12, 73728
    s_and_b32 s13, s3, 1
    s_lshl_b32 s13, s13, 6
    v_xor_b32 v{vCUR}, s13, v{vLB}
    v_add_u32 v{vCUR}, s12, v{vCUR}
    v_xor_b32 v{vCUR+1}, 32, v{vCUR}
    v_add_u32 v{vLB2}, 36864, v{vCUR}
    v_add_u32 v{vLB2+1}, 36864, v{vCUR+1}
    v_add_u32 v{vCUR+2}, {RS}, v{vSG}
    v_mov_b32 v{TMP+4}, v{vONE}
    v_mov_b32 v{TMP+5}, v{vONE}
    v_mov_b32 v{TMP+6}, v{vONE}
    v_mov_b32 v{TMP+7}, v{vONE}
    s_nop 1
    """)
    ones = f"v[{TMP+4}:{TMP+7}]"
    e(mf(ACC + 8, ones, f"v[{XF}:{XF+3}]", True))
    e(mf(ACC + 8, ones, f"v[{XF+4}:{XF+7}]", False))
    items = line_items(e, 0, lambda s, t, f: [mf(ACC + 4 * t, ones, f"v[{f}:{f+3}]", s == 0)], tiles=[0, 1])
    for s in range(16):
        f = nextfrag()
        items.append(([f"ds_read_b64_tr_b16 v[{f}:{f+1}], v{vCUR+2} offset:{s*1024}", f"ds_read_b64_tr_b16 v[{f+2}:{f+3}], v{vCUR+2} offset:{s*1024+256}"],
                      [mf(ACC + 8, ones, f"v[{f}:{f+3}]", False)], None))
    mfma_stream(e, items, [], dist=6)
    e(f"""
    s_lshl_b32 s12, s{sFB}, 10
    s_add_u32 s12, s12, {CSBUF}
    s_lshl_b32 s13, s3, 7
    s_add_u32 s13, s13, s12
    v_lshlrev_b32 v{vTMPA}, 2, v0
    v_cmp_gt_u32 vcc, 16, v0
    v_mov_b32 v{vTMPB}, 0x7ff00000
    s_nop 3
    v_cndmask_b32 v{vTMPA}, v{vTMPB}, v{vTMPA}, vcc
    """)
    for t in range(3):
        a = ACC + 4 * t
        dst = f"s13 offen offset:{64*t}" if t < 2 else "s12 offen offset:512"
        e(f"""
        v_and_b32 v{a+1}, 0xffff0000, v{a}
        v_sub_f32 v{a+2}, v{a}, v{a+1}
        v_cvt_pk_bf16_f32 v{a+1}, v{a+1}, v{a+2}
        buffer_store_dword v{a+1}, v{vTMPA}, {R(R_WS)}, {dst} sc1
        """)
    e(f"""
    s_waitcnt vmcnt(0)
    s_barrier
    s_lshl_b32 s13, s{sFB}, 6
    s_add_u32 s13, s13, {FCS}
    s_cmp_lg_u32 s3, 0
    s_cbranch_scc1 L_cjoin
    buffer_store_dwordx2 v[{vNON}:{vNON+1}], v{vL0}, {R(R_WS)}, s13 offen sc1
    L_cjoin:
    L_cstart:
    """)
    e.vm = []
    e.stamp(11)
    def w4_voff(dst, isrc):
        e(f"""
        v_add_u32 v{vTMPA}, {isrc}, v0
        v_mul_u32_u24 v{vTMPB}, 3641, v{vTMPA}
        v_lshrrev_b32 v{vTMPB}, 16, v{vTMPB}           ; row
        v_mul_u32_u24 v{vTMPC}, 18, v{vTMPB}
        v_sub_u32 v{vTMPA}, v{vTMPA}, v{vTMPC}         ; slot
        v_lshrrev_b32 v{vTMPC}, 1, v{vTMPA}            ; tau
        v_cmp_eq_u32 vcc, 0, v{vTMPC}
        v_add_u32 v{vTMPC}, s{sXCD}, v{vTMPC}
        v_and_b32 v{vTMPC}, 7, v{vTMPC}
        v_add_u32 v{vTMPC}, s14, v{vTMPC}
        v_mov_b32 v{dst}, s15                          ; 32 + sig
        v_cndmask_b32 v{vTMPC}, v{vTMPC}, v{dst}, vcc
        v_and_b32 v{vTMPA}, 1, v{vTMPA}
        v_lshl_add_u32 v{vTMPA}, v{vTMPC}, 1, v{vTMPA}
        v_mul_u32_u24 v{dst}, 1152, v{vTMPB}
        v_lshl_add_u32 v{dst}, v{vTMPA}, 4, v{dst}
        """)
    e(f"""
    s_lshl_b32 s12, s{sRB}, 1
    s_lshr_b32 s13, s3, 1
    s_add_u32 s12, s12, s13
    s_lshl_b32 s12, s12, 7
    s_add_u32 s12, s12, {FX}
    v_lshlrev_b32 v{vFA}, 3, v{vM}
    v_add_u32 v{vFA}, s12, v{vFA}
    s_lshl_b32 s13, s{sFB}, 6
    s_add_u32 s13, s13, {FCS}
    v_mov_b32 v{vTMPA}, s13
    v_cmp_eq_u32 vcc, 9, v0
    s_nop 1
    v_cndmask_b32 v{vFA}, v{vFA}, v{vTMPA}, vcc
    """)
    poll_issue(e)
    e(f"s_lshl_b32 s12, s3, 6\ns_add_u32 s13, s12, 256\ns_lshl_b32 s14, s{sSIG}, 3\ns_add_u32 s15, s{sSIG}, 32")
    w4_voff(vW4A, "s12"); w4_voff(vW4B, "s13"); w4_voff(vW4C, "512")
    vGB = XF + 53
    e(f"""
    s_mul_i32 s{sW4B}, s{sXCD}, 663552
    s_lshl_b32 s12, s{sRB}, 3
    s_lshl_b32 s13, s3, 1
    s_add_u32 s{sST0}, s12, s13
    s_lshl_b32 s12, s{sST0}, 3
    s_add_u32 s12, s12, s{sXCD}
    s_mul_i32 s{sGB}, s12, 18432
    s_add_u32 s{sGB}, s{sGB}, {GBUF}
    v_and_b32 v{vTMPA}, 1, v{vQ}
    v_lshlrev_b32 v{vGB}, 8, v{vTMPA}
    v_lshl_add_u32 v{vGB}, v{vM}, 4, v{vGB}
    v_lshrrev_b32 v{vTMPA}, 1, v{vQ}
    v_lshl_add_u32 v{vGB}, v{vTMPA}, 3, v{vGB}
    s_lshl_b32 s12, s{sRB}, 3
    s_add_u32 s12, s12, s{sXCD}
    s_lshl_b32 s12, s12, 2
    s_add_u32 s12, s12, s3
    s_lshl_b32 s12, s12, 7
    s_add_u32 s{sFGB}, s12, {FG}
    s_lshl_b32 s12, s{sSIG}, 3
    s_add_u32 s{sFGO}, s{sFGB}, s12
    s_mul_i32 s15, s{sST0}, 18432
    s_add_u32 s15, s15, {X1BUF}
    s_lshl_b32 s100, s{sROT}, 10
    """)
    set_bases(e, RA)
    poll_check(e, "0x3ff")
    e.vm = []
    e.stamp(12)
    e(f"s_mov_b32 s{sT3}, s100\ns_mov_b32 s{sT4}, s15")
    def x1load(s):
        def f():
            e(f"s_add_u32 s12, s{sT3}, s{sT4}\ns_add_u32 s13, s12, 18432")
            for u in range(2):
                e.vmem(f"buffer_load_dwordx4 a[{72*u+4*s}:{72*u+4*s+3}], v{vL16}, {R(R_WS)}, s{12+u} offen sc1", f"x1{s}")
            e(f"s_add_u32 s{sT3}, s{sT3}, 1024\ns_cmp_eq_u32 s{sT3}, 18432\ns_cselect_b32 s{sT3}, 0, s{sT3}")
        return f
    for s in range(XPD): x1load(s)()
    SL = XF; CS = XF + 16
    def stat_loads():
        e(f"""
        s_lshl_b32 s12, s{sST0}, 11
        s_add_u32 s12, s12, {STBUF}
        v_lshlrev_b32 v{vTMPA}, 7, v{vM}
        v_lshl_add_u32 v{vTMPA}, v{vQ}, 5, v{vTMPA}
        v_mov_b32 v{vTMPC}, 0x7ff00000
        v_cmp_gt_u32 vcc, 48, v0
        s_lshl_b32 s13, s{sFB}, 10
        s_add_u32 s13, s13, {CSBUF}
        v_cndmask_b32 v{vTMPA}, v{vTMPC}, v{vTMPA}, vcc
        v_lshlrev_b32 v{vTMPB}, 2, v0
        v_cmp_gt_u32 vcc, 16, v0
        s_nop 1
        v_cndmask_b32 v{vTMPB}, v{vTMPC}, v{vTMPB}, vcc
        """)
        for u in range(2):
            e.vmem(f"buffer_load_dwordx4 v[{SL+8*u}:{SL+8*u+3}], v{vTMPA}, {R(R_WS)}, s12 offen offset:{2048*u} sc1", "stat")
            e.vmem(f"buffer_load_dwordx2 v[{SL+8*u+4}:{SL+8*u+5}], v{vTMPA}, {R(R_WS)}, s12 offen offset:{2048*u+16} sc1", "stat")
        for t in range(9):
            e.vmem(f"buffer_load_dword v{CS+t}, v{vTMPB}, {R(R_WS)}, s13 offen offset:{64*t} sc1", "stat")
    GK = XF + 28; RBF = XF + 36; RAF = XF + 44
    def stats_setup():
        e.wait_vm_now("stat")
        for u in range(2):
            b = SL + 8 * u
            e(f"""
            v_add_f32 v{b}, v{b}, v{b+2}
            v_add_f32 v{b+1}, v{b+1}, v{b+3}
            v_add_f32 v{b}, v{b}, v{b+4}
            v_add_f32 v{b+1}, v{b+1}, v{b+5}
            """)
            xq_reduce(e, [b, b + 1], b + 2)
            stats_finish(e, b, b + 1, b + 2, GK + 4 * u + 2, b + 3)
            e(f"""
            v_rcp_f32 v{b+3}, v{GK+4*u+2}
            v_cvt_pk_bf16_f32 v{RBF+4*u}, -v{b+2}, -v{b+2}
            v_mov_b32 v{RBF+4*u+1}, 0
            v_mov_b32 v{RBF+4*u+2}, 0
            v_mov_b32 v{RBF+4*u+3}, 0
            v_mul_f32 v{GK+4*u}, {hex(f32bits(GC0))}, v{b+3}
            v_mul_f32 v{b+4}, v{b+3}, v{b+3}
            v_mul_f32 v{b+4}, v{b+4}, v{b+3}
            v_mul_f32 v{GK+4*u+1}, {hex(f32bits(GC1))}, v{b+4}
            """)
        for r in range(8): e(f"v_mov_b32 v{RAF+r}, 0")
    KORD = [(0, 0), (0, 1)] + [(d, i) for d in (1, 2, 3) for i in (0, 1)] + [(0, 2), (0, 3)] + \
           [(d, i) for d in (1, 2, 3) for i in (2, 3)] + [(None, 16), (None, 17)]
    W4ADDR = {}
    for k in range(7): W4ADDR[k] = RA + 2048 + 9216 * k
    for k in range(7, 15): W4ADDR[k] = RB + 9216 * (k - 7)
    W4ADDR[15] = RS
    for k in (16, 17): W4ADDR[k] = RA + 2048 + 9216 * (k - 16)
    def kappa_to(sreg, k):
        d, i = KORD[k]
        if d is None:
            e(f"s_mov_b32 s{sreg}, {i}")
        else:
            e(f"s_add_u32 s{sreg}, s{sSIG}, {d}\ns_and_b32 s{sreg}, s{sreg}, 3\ns_lshl_b32 s{sreg}, s{sreg}, 2\ns_add_u32 s{sreg}, s{sreg}, {i}")
    def w4_dma_ops(ks_list, tag):
        ops = []
        for k in ks_list:
            def opA(k=k):
                kappa_to(12, k)
                e(f"""
                s_lshl_b32 s13, s3, 10
                s_add_u32 s13, s13, {W4ADDR[k]}
                s_mov_b32 m0, s13
                s_mul_i32 s12, s12, {32*1152}
                s_add_u32 s{sT3}, s12, s{sW4B}
                s_add_u32 s{sT4}, s13, 4096
                """)
                e.vmem(f"buffer_load_dwordx4 v{vW4A}, {R(R_W4)}, s{sT3} offen lds", tag)
            def opB(k=k):
                e(f"s_mov_b32 m0, s{sT4}\ns_nop 0")
                e.vmem(f"buffer_load_dwordx4 v{vW4B}, {R(R_W4)}, s{sT3} offen lds", tag)
            ops += [opA, opB]
        for n in range((len(ks_list) + 3) // 4):
            def opC(n=n):
                cand = [ks_list[min(4 * n + w, len(ks_list) - 1)] for w in range(4)]
                e(f"s_mov_b32 s13, {W4ADDR[cand[0]] + 8192}")
                kappa_to(12, cand[0])
                for w in range(1, 4):
                    if cand[w] == cand[w - 1]: continue
                    kappa_to(14, cand[w])
                    e(f"s_cmp_ge_u32 s3, {w}\ns_cselect_b32 s12, s14, s12\ns_cselect_b32 s13, {W4ADDR[cand[w]] + 8192}, s13")
                e(f"s_mov_b32 m0, s13\ns_mul_i32 s12, s12, {32*1152}\ns_add_u32 s12, s12, s{sW4B}")
                e.vmem(f"buffer_load_dwordx4 v{vW4C}, {R(R_W4)}, s12 offen lds", tag)
            ops.append(opC)
        return ops
    OWN = XF + 56
    def ownreg(phi, p, u): return (OWN if phi == 0 else TMP + 24) + 8 * p + 4 * u
    def gfrag(k, u):
        d, i = KORD[k]
        if d == 0:
            r = ownreg(i >> 1, i & 1, u)
            return f"v[{r}:{r+3}]"
        if k < 8: a = 144 + 8 * (k - 2)
        elif k < 16: a = 192 + 8 * (k - 10)
        else: a = 240 + 8 * (k - 16)
        return f"a[{a+4*u}:{a+4*u+3}]"
    CACC = [ACC, ACC + 32, ACC + 64]
    def gelu_fill(phi):
        acc = CACC[phi]
        fl = []
        if phi < 2:
            for p in range(2):
                for u in range(2):
                    regs = [acc + 8 * (2 * p + t) + 4 * u + r for t in range(2) for r in range(4)]
                    o = ownreg(phi, p, u)
                    fl += interleave([gelu_chain(x, TMP + 8 * u + i, GK + 4 * u, GK + 4 * u + 1, GK + 4 * u + 2) for i, x in enumerate(regs)])
                    for q_ in range(4):
                        fl.append(f"v_cvt_pk_bf16_f32 v{o+q_}, v{regs[2*q_]}, v{regs[2*q_+1]}")
                    def st(u=u, o=o, p=p):
                        e(f"s_lshl_b32 s12, s{sSIG}, 12\ns_add_u32 s12, s12, s{sGB}\ns_add_u32 s12, s12, {(2*phi+p)*1024 + u*8*18432}")
                        e.vmem(f"buffer_store_dwordx4 v[{o}:{o+3}], v{vL16}, {R(R_WS)}, s12 offen sc1", f"gst{phi}")
                    fl.append(st)
        else:
            regs = [acc + r for r in range(8)]
            o = TMP + 16
            fl += interleave([gelu_chain(x, TMP + i, GK + 4 * (i >> 2), GK + 4 * (i >> 2) + 1, GK + 4 * (i >> 2) + 2) for i, x in enumerate(regs)])
            for q_ in range(4):
                fl.append(f"v_cvt_pk_bf16_f32 v{o+q_}, v{regs[2*q_]}, v{regs[2*q_+1]}")
            def st():
                e(f"s_lshl_b32 s12, s{sSIG}, 9\ns_add_u32 s12, s12, s{sGB}\ns_add_u32 s12, s12, 16384\ns_add_u32 s13, s12, {8*18432}")
                e.vmem(f"buffer_store_dwordx2 v[{o}:{o+1}], v{vGB}, {R(R_WS)}, s12 offen sc1", "gst2")
                e.vmem(f"buffer_store_dwordx2 v[{o+2}:{o+3}], v{vGB}, {R(R_WS)}, s13 offen sc1", "gst2")
            fl.append(st)
        return fl
    def gflag(phi):
        def f():
            e.wait_vm_now(f"gst{phi}")
            e(f"s_add_u32 s12, s{sFGO}, {32*phi}")
            e.vmem(f"buffer_store_dwordx2 v[{vNON}:{vNON+1}], v{vL0}, {R(R_WS)}, s12 offen sc1", "flagst")
        return f
    def g_poll_issue(phi):
        def f():
            e(f"s_add_u32 s12, s{sFGB}, {32*phi}\nv_lshlrev_b32 v{vFA}, 3, v{vM}\nv_add_u32 v{vFA}, s12, v{vFA}")
            poll_issue(e)
        return f
    def g_loads(ks):
        ops = [lambda: poll_check(e, "0xf")]
        for k in ks:
            def f(k=k):
                kappa_to(12, k)
                e(f"s_lshl_b32 s12, s12, 10\ns_add_u32 s12, s12, s{sGB}\ns_add_u32 s13, s12, {8*18432}")
                for u in range(2):
                    e.vmem(f"buffer_load_dwordx4 {gfrag(k, u)}, v{vL16}, {R(R_WS)}, s{12+u} offen sc1", f"g{k}")
            ops.append(f)
        return ops
    def rank1(acc, tiles, cs0):
        for t in range(tiles):
            ra = RAF + 4 * (t % 2)
            e(f"v_mov_b32 v{ra}, v{CS+cs0+t}\ns_nop 1")
            for u in range(2):
                e(mf(acc + 8 * t + 4 * u, f"v[{ra}:{ra+3}]", f"v[{RBF+4*u}:{RBF+4*u+3}]", False))
    def cm(phi):
        return lambda s, t, f: [mf(CACC[phi] + 8 * t + 4 * u, f"v[{f}:{f+3}]", f"a[{72*u+4*s}:{72*u+4*s+3}]", s == 0) for u in range(2)]
    items = line_items(e, RA, cm(0), pre=lambda s: (lambda: e.wait_vm_now(f"x1{s}")))
    bt = [(4 * (s - XPD), 4 * (s - XPD) + 1, [x1load(s)]) for s in range(XPD, 18)]
    bt.append((4 * (18 - XPD), 4 * (18 - XPD) + 1, [stat_loads]))
    mfma_stream(e, items, [], dist=4, batches=bt)
    stats_setup()
    rank1(CACC[0], 4, 0)
    e.stamp(13)
    set_bases(e, RB)
    e.wait_all()
    e("s_barrier")
    items = line_items(e, RB, cm(1))
    mfma_stream(e, items, [], dist=4, batches=[
        (2, 46, gelu_fill(0)),
        (0, 58, single_dma_ops(e, list(range(16)), RS, "w4a") + single_dma_ops(e, [16, 17], RA, "w4a") + w4_dma_ops(list(range(0, 7)), "w4a")),
        (60, 61, [gflag(0)]),
    ])
    rank1(CACC[1], 4, 4)
    e.wait_vm_now("w4a")
    e("s_barrier")
    e.stamp(14)
    DA = 48
    def mfa(acc, a_, b_, first):
        c = "0" if first else f"a[{acc}:{acc+3}]"
        return f"v_mfma_f32_16x16x32_bf16 a[{acc}:{acc+3}], {a_}, {b_}, {c}"
    def d_item(k, tau, first_of_k, first=None):
        f = nextfrag()
        rd = gen2.tr_reads(f, vTR4, W4ADDR[k] + tau * 32, 2304)
        ms = [mfa(DA + 8 * tau + 4 * u, f"v[{f}:{f+3}]", gfrag(k, u), k == 0) for u in range(2)]
        pre = (lambda k=k: e.wait_vm_now(f"g{k}")) if first_of_k else None
        return (rd, ms, pre)
    e(f"v_add_u32 v{vCUR}, {RS}, v{vSG}")
    items = []
    for s in range(18):
        f = nextfrag()
        if s < 16:
            rd = [f"ds_read_b64_tr_b16 v[{f}:{f+1}], v{vCUR} offset:{s*1024}", f"ds_read_b64_tr_b16 v[{f+2}:{f+3}], v{vCUR} offset:{s*1024+256}"]
        else:
            rd = [f"ds_read_b64_tr_b16 v[{f}:{f+1}], v{vSG} offset:{RA+(s-16)*1024}", f"ds_read_b64_tr_b16 v[{f+2}:{f+3}], v{vSG} offset:{RA+(s-16)*1024+256}"]
        items.append((rd, cm(2)(s, 0, f), None))
    g1 = gelu_fill(1)
    h1 = len(g1) // 2
    w4b = w4_dma_ops(list(range(7, 15)), "w4b")
    mfma_stream(e, items, [], dist=4, batches=[
        (2, 18, g1[:h1]),
        (0, 18, w4b[:6]),
        (4, 5, [g_poll_issue(0)]),
        (14, 18, g_loads(list(range(2, 8)))),
    ])
    rank1(CACC[2], 1, 8)
    e("s_barrier")
    items = [d_item(k, tau, tau == 0) for k in range(0, 7) for tau in range(9)]
    mfma_stream(e, items, [], batches=[
        (0, 16, g1[h1:]),
        (16, 22, gelu_fill(2)),
        (0, 40, w4b[6:] + w4_dma_ops([15], "w4b")),
        (30, 31, [gflag(1)]),
        (36, 37, [gflag(2)]),
        (50, 51, [g_poll_issue(1)]),
    ])
    e.wait_vm_now("w4b")
    e("s_barrier")
    e.stamp(15)
    XR2 = TMP + 16
    def fin_prep():
        e(f"""
        s_lshl_b32 s12, s{sRB}, 2
        s_add_u32 s12, s12, s{sSIG}
        s_mul_i32 s12, s12, 9
        s_lshl_b32 s{sPB}, s12, 15
        s_lshl_b32 s13, s3, 10
        s_add_u32 s{sPB}, s{sPB}, s13
        s_add_u32 s{sPB}, s{sPB}, {PBUF}
        s_lshl_b32 s{sFPB}, s12, 8
        s_lshl_b32 s13, s3, 6
        s_add_u32 s{sFPB}, s{sFPB}, s13
        s_add_u32 s{sFPB}, s{sFPB}, {FP}
        s_lshl_b32 s12, s{sSIG}, 3
        s_add_u32 s12, s12, s{sXCD}
        s_lshl_b32 s12, s12, 9
        s_mul_i32 s13, s{sST0}, 18432
        s_add_u32 s12, s12, s13
        s_add_u32 s12, s12, {X1BUF}
        s_add_u32 s13, s12, 18432
        """)
        e.vmem(f"buffer_load_dwordx2 v[{XR2}:{XR2+1}], v{vGB}, {R(R_WS)}, s12 offen sc1", "xr")
        e.vmem(f"buffer_load_dwordx2 v[{XR2+2}:{XR2+3}], v{vGB}, {R(R_WS)}, s13 offen sc1", "xr")
        e(f"""
        s_add_u32 s12, s{sSIG}, 32
        s_lshl_b32 s12, s12, 9
        s_lshl_b32 s13, s{sRB}, 3
        s_add_u32 s13, s13, s{sXCD}
        s_mul_i32 s13, s13, 18432
        s_add_u32 s12, s12, s13
        s_add_u32 s12, s12, {X1BUF}
        """)
        e.vmem(f"buffer_load_dwordx2 v[{XR2+4}:{XR2+5}], v{vGB}, {R(R_WS)}, s12 offen sc1", "xr")
    KP2 = 12
    items = [d_item(k, tau, tau == 0) for k in range(7, KP2) for tau in range(9)]
    mfma_stream(e, items, [], batches=[
        (0, 12, g_loads(list(range(10, 16)))),
        (12, 20, w4_dma_ops([16, 17], "w4d") + [g_poll_issue(2)]),
        (20, 24, [fin_prep]),
        (30, 34, g_loads([16, 17])),
    ])
    e.wait_vm_now("w4d")
    e("s_barrier")
    def tsel(tau):
        if tau == 0: e("s_mov_b32 s12, 8")
        else: e(f"s_add_u32 s12, s{sXCD}, {tau}\ns_and_b32 s12, s12, 7")
    def p_epi(tau):
        o = ACC + 8 * (tau % 2)
        q_ = ACC + 16 + 4 * tau
        fl = [f"v_accvgpr_read_b32 v{o+r}, a{DA+8*tau+r}" for r in range(8)]
        fl += [f"v_cvt_pk_bf16_f32 v{q_+p}, v{o+2*p}, v{o+2*p+1}" for p in range(4)]
        def st():
            tsel(tau)
            e(f"s_lshl_b32 s12, s12, 3\ns_add_u32 s12, s12, s{sXCD}\ns_lshl_b32 s12, s12, 12\ns_add_u32 s12, s12, s{sPB}")
            e.vmem(f"buffer_store_dwordx4 v[{q_}:{q_+3}], v{vL16}, {R(R_WS)}, s12 offen sc1", f"p{tau}")
        fl.append(st)
        return fl
    def p_flag(tau):
        def f():
            e.wait_vm_now(f"p{tau}")
            tsel(tau)
            e(f"s_lshl_b32 s12, s12, 5\ns_add_u32 s12, s12, s{sXCD}\ns_lshl_b32 s12, s12, 3\ns_add_u32 s12, s12, s{sFPB}")
            e.vmem(f"buffer_store_dwordx2 v[{vNON}:{vNON+1}], v{vL0}, {R(R_WS)}, s12 offen sc1", "flagst")
        return f
    nk = 18 - KP2
    items = [d_item(k, tau, tau == 0) for tau in range(9) for k in range(KP2, 18)]
    bt = []
    FD = 5
    for tau in range(8):
        bt.append((nk * (tau + 1) + 2, nk * (tau + 2) - 1, p_epi(tau)))
        if tau + FD <= 8:
            bt.append((nk * (tau + FD) + nk - 1, nk * (tau + FD) + nk, [p_flag(tau)]))
    mfma_stream(e, items, [], batches=bt)
    for tau in range(9 - FD, 8):
        p_flag(tau)()
    def finish(vals, nvals, xr, outreg):
        for p in range(nvals // 2):
            x0, x1 = vals + 2 * p, vals + 2 * p + 1
            e(f"""
            v_cvt_pk_bf16_f32 v{x1}, v{x0}, v{x1}
            v_lshlrev_b32 v{x0}, 16, v{x1}
            v_and_b32 v{x1}, 0xffff0000, v{x1}
            v_lshlrev_b32 v{vTMPA}, 16, v{xr+p}
            v_and_b32 v{vTMPB}, 0xffff0000, v{xr+p}
            v_add_f32 v{x0}, v{x0}, v{vTMPA}
            v_add_f32 v{x1}, v{x1}, v{vTMPB}
            v_cvt_pk_bf16_f32 v{outreg+p}, v{x0}, v{x1}
            """)
    vOA = XF + 54
    PL = XF
    V = TMP
    e(f"""
    v_mul_u32_u24 v{vOA}, 1152, v{vM}
    v_lshl_add_u32 v{vOA}, v{vQ}, 3, v{vOA}
    v_lshlrev_b32 v{vFA}, 3, v{vM}
    s_add_u32 s12, s{sFPB}, {8*256}
    v_add_u32 v{vFA}, s12, v{vFA}
    s_lshr_b32 s12, s{sXCD}, 1
    s_cmp_lg_u32 s12, s3
    s_cbranch_scc1 L_no8
    """)
    save = list(e.vm)
    poll_issue(e)
    poll_check(e, "0xff")
    e(f"""
    s_and_b32 s12, s{sXCD}, 1
    s_lshl_b32 s12, s12, 3
    s_add_u32 s12, s12, s{sPB}
    s_add_u32 s12, s12, {8*32768}
    """)
    for src in range(8):
        e(f"buffer_load_dwordx2 v[{PL+2*src}:{PL+2*src+1}], v{vL16}, {R(R_WS)}, s12 offen sc1\ns_add_u32 s12, s12, 4096")
    e("s_waitcnt vmcnt(0)")
    for p in range(2):
        e(f"v_lshlrev_b32 v{V+2*p}, 16, v{PL+p}\nv_and_b32 v{V+2*p+1}, 0xffff0000, v{PL+p}")
    for src in range(1, 8):
        for p in range(2):
            e(f"""
            v_lshlrev_b32 v{vTMPA}, 16, v{PL+2*src+p}
            v_and_b32 v{vTMPB}, 0xffff0000, v{PL+2*src+p}
            v_add_f32 v{V+2*p}, v{V+2*p}, v{vTMPA}
            v_add_f32 v{V+2*p+1}, v{V+2*p+1}, v{vTMPB}
            """)
    finish(V, 4, XR2 + 4, TMP + 8)
    e(f"""
    s_lshl_b32 s12, s{sRB}, 3
    s_add_u32 s12, s12, s{sXCD}
    s_mul_i32 s12, s12, {16*1152}
    s_lshl_b32 s13, s{sSIG}, 5
    s_add_u32 s12, s12, s13
    s_add_u32 s12, s12, 1024
    buffer_store_dwordx2 v[{TMP+8}:{TMP+9}], v{vOA}, {R(R_OUT)}, s12 offen
    L_no8:
    """)
    e.vm = save
    e(f"""
    s_lshl_b32 s12, s{sXCD}, 8
    s_add_u32 s12, s12, s{sFPB}
    v_lshlrev_b32 v{vFA}, 3, v{vM}
    v_add_u32 v{vFA}, s12, v{vFA}
    s_lshl_b32 s15, 1, s{sXCD}
    s_xor_b32 s15, s15, 0xff
    """)
    poll_issue(e)
    for r in range(8):
        e(f"v_accvgpr_read_b32 v{V+r}, a{DA+64+r}")
    poll_check(e, "s15")
    e(f"s_lshl_b32 s13, s{sXCD}, 15\ns_add_u32 s13, s13, s{sPB}")
    for d in range(1, 8):
        e(f"s_add_u32 s12, s{sXCD}, {d}\ns_and_b32 s12, s12, 7\ns_lshl_b32 s12, s12, 12\ns_add_u32 s12, s12, s13")
        e.vmem(f"buffer_load_dwordx4 v[{PL+4*(d-1)}:{PL+4*(d-1)+3}], v{vL16}, {R(R_WS)}, s12 offen sc1", f"pl{d}")
    for d in range(1, 8):
        e.wait_vm_now(f"pl{d}")
        for p in range(4):
            r_ = PL + 4 * (d - 1) + p
            e(f"""
            v_lshlrev_b32 v{vTMPA}, 16, v{r_}
            v_and_b32 v{vTMPB}, 0xffff0000, v{r_}
            v_add_f32 v{V+2*p}, v{V+2*p}, v{vTMPA}
            v_add_f32 v{V+2*p+1}, v{V+2*p+1}, v{vTMPB}
            """)
    finish(V, 8, XR2, TMP + 8)
    e(f"""
    s_mul_i32 s12, s{sST0}, {16*1152}
    s_lshl_b32 s13, s{sSIG}, 8
    s_add_u32 s12, s12, s13
    s_lshl_b32 s13, s{sXCD}, 5
    s_add_u32 s12, s12, s13
    s_add_u32 s13, s12, {16*1152}
    buffer_store_dwordx2 v[{TMP+8}:{TMP+9}], v{vOA}, {R(R_OUT)}, s12 offen
    buffer_store_dwordx2 v[{TMP+10}:{TMP+11}], v{vOA}, {R(R_OUT)}, s13 offen
    """)
    if STAMPS:
        e(f"""
        s_memrealtime s[96:97]
        s_waitcnt lgkmcnt(0)
        s_lshl_b32 s12, s2, 2
        s_add_u32 s12, s12, s3
        s_lshl_b32 s12, s12, 8
        s_add_u32 s12, s12, {STAMPBUF}
        """)
        for i in range(17):
            e(f"""
            v_mov_b32 v{TMP+20}, s{64+2*i}
            v_mov_b32 v{TMP+21}, s{65+2*i}
            buffer_store_dwordx2 v[{TMP+20}:{TMP+21}], v{vL0}, {R(R_WS)}, s12 offen offset:{8*i}
            s_nop 1
            """)
    if DBGT:
        e(f"""
        s_memrealtime s[96:97]
        s_waitcnt lgkmcnt(0)
        v_mov_b32 v{TMP+20}, s96
        v_sub_u32 v{TMP+20}, v{TMP+20}, v{vNON}
        buffer_atomic_umax v{TMP+20}, v{vL0}, {R(R_DBG)}, 0 offen offset:16
        """)
    e("L_end:\ns_endpgm")
    return e

DBGT = False
NW3A_EARLY = 8
NW1_EARLY = 4
HPD = 8
XPD = 5
NW3B_EARLY = 18

def build_text(code_size):
    e = gen()
    s = HEADER + f"; @launch grid=(256,1,1) block=(256,1,1) lds={LDS_TOTAL}\n"
    s += '.amdgcn_target "amdgcn-amd-amdhsa--gfx950"\n.text\n' + e.text().replace("CODE_SIZE", hex(code_size)) + kd(NAME, 512, 256)
    return s

def main(path):
    import subprocess
    s = build_text(0x1000)
    open(path, "w").write(s)
    r = subprocess.run(f"clang -x assembler -target amdgcn-amd-amdhsa -mcpu=gfx950 -c {path} -o _g4.o && llvm-readelf -S _g4.o", shell=True, capture_output=True, text=True)
    if r.returncode:
        print(r.stderr[:3000]); sys.exit(1)
    sz = int(re.search(r"\.text\s+PROGBITS\s+\w+\s+\w+\s+(\w+)", r.stdout).group(1), 16)
    print("code size", sz)
    s = build_text((sz - 128) & ~3)
    open(path, "w").write(s)

if __name__ == "__main__":
    STAMPS = "--stamps" in sys.argv
    DBGT = "--dbgt" in sys.argv
    main(sys.argv[1])
```

```python
from gen_common import *
import sys, re
import gen2
from gen2 import G, srd, R, xq_reduce, stats_finish, gelu_chain, interleave, cost, mfma_stream, mf

NAME = "standalone__mixer_s_mlp__sampling_kernel"
HBUF = 0
X1BUF = 0x120000
STBUF = 0x240000
CSBUF = 0x260000
FH = 0x270000
FX = 0x271000
FCS = 0x272000
FG = 0x274000
FP = 0x280000
GBUF = 0x300000
PBUF = 0xC00000
WSEND = 0x1600000
STAMPBUF = 0x1E00000

S_X, S_W1, S_W2, S_W3, S_W4, S_OUT, S_DBG, S_WS = 16, 18, 20, 22, 24, 26, 28, 30
R_X, R_W1, R_W2, R_W3, R_W4, R_WS, R_OUT, R_DBG = 32, 36, 40, 44, 48, 52, 56, 60
sXCD, sIDX, sRG, sJ, sSIG, sRB = 4, 5, 6, 7, 8, 9
sNON = 10
sFB, sW3C, sROT, sST0, sGB, sFGB, sFGO, sW4B, sPB, sFPB, sHROT, sT0, sT1, sT2, sT3, sT4 = range(16, 32)

vQ, vM, vZERO = 1, 2, 3
vDL = 4
vDS = 5
vLB = 6
vL16 = 10
vW4A, vW4B, vW4C = 11, 12, 13
vCUR = 14
vONE, vL0 = 18, 19
vFL, vFA, vNON = 20, 22, 24
vTR4 = 26
vTMPA, vTMPB, vTMPC = 29, 30, 31
XF, AF, ACC, TMP = 32, 104, 136, 208
vSG = 23

RA, RB, RS = 0, 73728, 147456
LDS_TOTAL = 163840
STAMPS = False
BOUND = "0x8000"

def poll_issue(e, tag="flag"):
    e.vmem(f"buffer_load_dwordx2 v[{vFL}:{vFL+1}], v{vFA}, {R(R_WS)}, 0 offen sc1", tag)

def poll_check(e, mask, tag="flag", sleep=1):
    L = e.label("poll")
    e.wait_vm_now(tag)
    e(f"""
    s_mov_b32 s14, 0
    {L}:
    v_cmp_ne_u64 vcc, v[{vFL}:{vFL+1}], v[{vNON}:{vNON+1}]
    s_and_b32 s12, vcc_lo, {mask}
    s_cbranch_scc0 {L}_ok
    s_add_u32 s14, s14, 1
    s_cmp_gt_u32 s14, {BOUND}
    s_cbranch_scc1 {L}_ok
    s_sleep {sleep}
    buffer_load_dwordx2 v[{vFL}:{vFL+1}], v{vFA}, {R(R_WS)}, 0 offen sc1
    s_waitcnt vmcnt(0)
    s_branch {L}
    {L}_ok:
    """)

def line_voff(e, pitch, w1swap):
    e(f"""
    v_lshrrev_b32 v{vTMPA}, 3, v0                  ; row
    v_and_b32 v{vTMPB}, 6, v{vTMPA}
    v_and_b32 v{vTMPC}, 7, v0
    v_xor_b32 v{vTMPB}, v{vTMPB}, v{vTMPC}         ; idx
    v_lshlrev_b32 v{vTMPB}, 2, v{vTMPB}
    v_mov_b32 v{vTMPC}, 0x75643120
    v_lshrrev_b32 v{vTMPB}, v{vTMPB}, v{vTMPC}
    v_and_b32 v{vTMPB}, 7, v{vTMPB}                ; piece
    """)
    if w1swap:
        e(f"""
        v_and_b32 v{vTMPC}, 4, v{vTMPA}
        v_add_u32 v{vTMPA}, v{vTMPA}, v{vTMPC}
        """)
    e(f"""
    v_mul_u32_u24 v{vDL}, {pitch}, v{vTMPA}
    v_lshl_add_u32 v{vDL}, v{vTMPB}, 4, v{vDL}
    """)

def line_dma_ops(e, rsrc, pitch, region, scol, srot, tag, w1swap=False, issue_rot=None):
    ops = []
    for n in range(18):
        def op(n=n):
            if issue_rot is None:
                e(f"s_mul_i32 s12, s3, 18\ns_add_u32 s12, s12, {n}")
            else:
                e(f"""
                s_add_u32 s12, s{issue_rot}, {n}
                s_sub_u32 s13, s12, 18
                s_cmp_ge_u32 s12, 18
                s_cselect_b32 s12, s13, s12
                s_mul_i32 s13, s3, 18
                s_add_u32 s12, s12, s13
                """)
            e(f"""
            s_lshl_b32 s13, s12, 10
            s_add_u32 s13, s13, {region}
            s_mov_b32 m0, s13
            """)
            if srot is not None:
                e(f"""
                s_lshl_b32 s13, s{srot}, 2
                s_add_u32 s12, s12, s13
                s_sub_u32 s13, s12, 72
                s_cmp_ge_u32 s12, 72
                s_cselect_b32 s12, s13, s12
                """)
            if w1swap:
                e(f"""
                s_and_b32 s13, s12, 1
                s_lshl_b32 s12, s12, 1
                s_sub_u32 s12, s12, s13
                s_mul_i32 s12, s12, {4*pitch}
                """)
            else:
                e(f"s_mul_i32 s12, s12, {8*pitch}")
            e(f"s_add_u32 s12, s12, s{scol}")
            e.vmem(f"buffer_load_dwordx4 v{vDL}, {R(rsrc)}, s12 offen lds", tag)
        ops.append(op)
    return ops

def single_dma_ops(e, slots, ldsbase, tag):
    ops = []
    s0, cnt = slots[0], len(slots)
    for n in range((cnt + 3) // 4):
        def op(n=n):
            e(f"""
            s_add_u32 s12, s3, {4*n}
            s_min_u32 s12, s12, {cnt-1}
            s_lshl_b32 s13, s12, 10
            s_add_u32 s13, s13, {ldsbase}
            s_mov_b32 m0, s13
            s_add_u32 s12, s12, s{sROT}
            s_add_u32 s12, s12, {s0}
            s_sub_u32 s13, s12, 18
            s_cmp_ge_u32 s12, 18
            s_cselect_b32 s12, s13, s12
            s_mul_i32 s12, s12, {32*9216}
            """)
            e.vmem(f"buffer_load_dwordx4 v{vDS}, {R(R_W3)}, s12 offen lds", tag)
        ops.append(op)
    return ops

class Ring:
    cnt = 0
def nextfrag():
    f = AF + 4 * (Ring.cnt % 8); Ring.cnt += 1
    return f

def line_items(e, region, mk_mfmas, pre=None, tiles=range(4)):
    items = []
    for s in range(18):
        for t in tiles:
            f = nextfrag()
            hi = s >= 9
            off = (s - 9 * hi) * 4096
            b = (vCUR if not hi else vLB2) + t
            rd = [f"ds_read_b64_tr_b16 v[{f}:{f+1}], v{b} offset:{off}",
                  f"ds_read_b64_tr_b16 v[{f+2}:{f+3}], v{b} offset:{off+1024}"]
            items.append((rd, mk_mfmas(s, t, f), pre(s) if (pre and t == tiles[0]) else None))
    return items
vLB2 = TMP + 44

def set_bases(e, region):
    for t in range(4):
        e(f"v_add_u32 v{vCUR+t}, {region}, v{vLB+t}")
        e(f"v_add_u32 v{vLB2+t}, {region+36864}, v{vLB+t}")

def gen():
    gen2.STAMPS = STAMPS
    Ring.cnt = 0
    e = G()
    e.lines.append(kstart(NAME))
    e("s_cmp_ge_u32 s2, 256\ns_cbranch_scc1 L_end")
    e.stamp(0)
    e(f"""
    s_load_dwordx16 s[16:31], s[0:1], 0
    s_memrealtime s[{sNON}:{sNON+1}]
    s_getpc_b64 s[98:99]
    v_lshrrev_b32 v1, 6, v0
    v_and_b32 v0, 63, v0
    s_nop 0
    v_readfirstlane_b32 s3, v1
    v_lshrrev_b32 v{vQ}, 4, v0
    v_and_b32 v{vM}, 15, v0
    v_mov_b32 v{vZERO}, 0
    v_lshlrev_b32 v{vL16}, 4, v0
    v_mov_b32 v{vONE}, 0x3f803f80
    s_and_b32 s{sXCD}, s2, 7
    s_lshr_b32 s{sIDX}, s2, 3
    s_cmp_lg_u32 s{sIDX}, 0
    s_cbranch_scc1 L_nopf
    v_lshlrev_b32 v{vTMPA}, 7, v0
    s_lshl_b32 s12, s3, 13
    v_add_u32 v{vTMPA}, s12, v{vTMPA}
    v_add_u32 v{vTMPB}, 0x8000, v{vTMPA}
    v_min_u32 v{vTMPA}, CODE_SIZE, v{vTMPA}
    v_min_u32 v{vTMPB}, CODE_SIZE, v{vTMPB}
    global_load_dword v{TMP+43}, v{vTMPA}, s[98:99]
    global_load_dword v{TMP+42}, v{vTMPB}, s[98:99]
    L_nopf:
    s_and_b32 s{sSIG}, s{sIDX}, 3
    s_lshr_b32 s{sRB}, s{sIDX}, 2
    s_lshl_b32 s{sRG}, s{sXCD}, 1
    s_cmp_ge_u32 s{sIDX}, 9
    s_cselect_b32 s12, 1, 0
    s_cselect_b32 s13, 9, 0
    s_add_u32 s{sRG}, s{sRG}, s12
    s_sub_u32 s{sJ}, s{sIDX}, s13
    v_cmp_eq_u32 vcc, 0, v0
    v_mov_b32 v{vL0}, 0x7ff00000
    v_lshrrev_b32 v{vTMPA}, 3, v0
    v_cndmask_b32 v{vL0}, v{vL0}, v{vZERO}, vcc
    v_lshrrev_b32 v{vTMPB}, 1, v{vTMPA}
    v_and_b32 v{vTMPC}, 7, v0
    v_xor_b32 v{vTMPB}, v{vTMPB}, v{vTMPC}
    v_mul_u32_u24 v{TMP}, 1152, v{vTMPA}
    v_lshl_add_u32 v{TMP}, v{vTMPB}, 4, v{TMP}
    v_xor_b32 v{TMP+1}, 64, v{TMP}
    v_add_u32 v{TMP+1}, {8*1152}, v{TMP+1}
    """)
    line_voff(e, 1152, True)
    e("s_waitcnt lgkmcnt(0)")
    srd(e, R_X, S_X, 1024 * 1152)
    srd(e, R_W1, S_W1, 576 * 1152)
    e(f"""
    s_cmp_ge_u32 s{sIDX}, 18
    s_cbranch_scc1 L_skipx
    s_lshl_b32 s12, s{sRG}, 6
    s_lshl_b32 s13, s3, 4
    s_add_u32 s12, s12, s13
    s_mul_i32 s15, s12, 1152
    s_mul_i32 s14, s3, 18432
    s_add_u32 s14, s14, {RB}
    s_mov_b32 s100, s{sJ}
    """)
    for n in range(9):
        e(f"""
        s_lshl_b32 s12, s100, 11
        s_add_u32 s12, s12, s14
        s_mov_b32 m0, s12
        s_lshl_b32 s13, s100, 7
        s_add_u32 s13, s13, s15
        s_add_u32 s12, s12, 1024
        buffer_load_dwordx4 v{TMP}, {R(R_X)}, s13 offen lds
        s_mov_b32 m0, s12
        s_add_u32 s100, s100, 1
        s_cmp_eq_u32 s100, 9
        buffer_load_dwordx4 v{TMP+1}, {R(R_X)}, s13 offen lds
        s_cselect_b32 s100, 0, s100
        """)
    e(f"s_lshl_b32 s15, s{sJ}, 7\ns_mov_b32 s101, s{sRG}")
    e.vm = ["x"] * 18
    w1ops = line_dma_ops(e, R_W1, 1152, RA, 15, None, "w1", w1swap=True, issue_rot=101)
    for op in w1ops[:NW1_EARLY]: op()
    w1ops = w1ops[NW1_EARLY:]
    vm_front = list(e.vm)
    e("L_skipx:")
    srd(e, R_W2, S_W2, 576 * 1152)
    srd(e, R_W3, S_W3, 576 * 9216)
    srd(e, R_W4, S_W4, 4608 * 1152)
    srd(e, R_WS, S_WS, 0x10000000 if STAMPS else WSEND)
    srd(e, R_OUT, S_OUT, 1024 * 1152)
    srd(e, R_DBG, S_DBG, 256)
    e.stamp(1)
    e(f"""
    s_or_b32 s12, s2, s3
    s_cmp_lg_u32 s12, 0
    s_cbranch_scc1 L_nononce
    s_or_b32 s{sNON+1}, s{sNON+1}, 0x40000000
    v_mov_b32 v{vNON}, s{sNON}
    v_mov_b32 v{vNON+1}, s{sNON+1}
    buffer_store_dwordx2 v[{vNON}:{vNON+1}], v{vL0}, {R(R_DBG)}, 0 offen sc1
    L_nononce:
    """)
    e(f"""
    v_lshrrev_b32 v{vTMPA}, 5, v0
    v_lshlrev_b32 v{vTMPA}, 4, v{vTMPA}
    v_bfe_u32 v{vTMPB}, v0, 4, 1
    v_lshl_add_u32 v{vTMPA}, v{vTMPB}, 2, v{vTMPA}
    v_bfe_u32 v{vTMPB}, v0, 2, 2
    v_add_u32 v{vTMPA}, v{vTMPA}, v{vTMPB}             ; row (t=0)
    v_and_b32 v{vTMPB}, 3, v0
    v_lshlrev_b32 v{vTMPB}, 3, v{vTMPB}                ; c*8
    v_mul_u32_u24 v{vTR4}, 288, v{vTMPA}
    v_add_u32 v{vTR4}, v{vTR4}, v{vTMPB}
    v_add_u32 v{vTR4+1}, 0x10000, v{vTR4}
    v_add_u32 v{vTR4+2}, 0x20000, v{vTR4}
    v_lshl_add_u32 v{vSG}, v{vTMPA}, 5, v{vTMPB}
    v_lshl_add_u32 v{vLB}, v{vTMPA}, 7, v{vTMPB}       ; row*128 + c*8
    v_bfe_u32 v{vTMPC}, v{vTMPA}, 1, 2                 ; kappa
    v_lshl_add_u32 v{vLB}, v{vTMPC}, 5, v{vLB}         ; tau=0
    v_xor_b32 v{vLB+1}, 32, v{vLB}
    v_xor_b32 v{vLB+2}, 64, v{vLB}
    v_xor_b32 v{vLB+3}, 96, v{vLB}
    s_lshl_b32 s{sFB}, s{sXCD}, 2
    s_add_u32 s{sFB}, s{sFB}, s{sSIG}
    s_mul_i32 s{sW3C}, s{sXCD}, 1152
    s_lshl_b32 s12, s{sSIG}, 5
    s_add_u32 s12, s12, s{sW3C}
    s_add_u32 s12, s12, 1024
    s_lshl_b32 s13, s{sSIG}, 8
    s_add_u32 s{sW3C}, s{sW3C}, s13
    s_mul_i32 s{sROT}, s{sSIG}, 9
    s_lshr_b32 s{sROT}, s{sROT}, 1      ; 0,4,9,13
    v_lshrrev_b32 v{vTMPA}, 1, v0
    v_mul_u32_u24 v{vDS}, 9216, v{vTMPA}
    v_and_b32 v{vTMPA}, 1, v0
    v_lshl_add_u32 v{vDS}, v{vTMPA}, 4, v{vDS}
    v_add_u32 v{vDS}, s12, v{vDS}
    s_cmp_ge_u32 s{sIDX}, 18
    s_cbranch_scc1 L_idle
    """)
    def nonce_load():
        e.vmem(f"buffer_load_dwordx2 v[{vNON}:{vNON+1}], v{vZERO}, {R(R_DBG)}, 0 offen sc1", "nonce")
    def nonce_check():
        L = e.label("non")
        e(f"""
        s_mov_b32 s14, 0
        {L}:
        v_cmp_ne_u32 vcc, 0, v{vNON+1}
        s_cbranch_vccnz {L}_ok
        s_add_u32 s14, s14, 1
        s_cmp_gt_u32 s14, {BOUND}
        s_cbranch_scc1 {L}_ok
        s_sleep 1
        buffer_load_dwordx2 v[{vNON}:{vNON+1}], v{vZERO}, {R(R_DBG)}, 0 offen sc1
        s_waitcnt vmcnt(0)
        s_branch {L}
        {L}_ok:
        """)
    e.vm = vm_front
    XA = TMP + 2
    XR = TMP + 32
    e(f"""
    v_lshrrev_b32 v{vTMPA}, 1, v{vM}
    v_xor_b32 v{vTMPB}, v{vTMPA}, v{vQ}
    v_lshlrev_b32 v{XA}, 7, v{vM}
    v_add_u32 v{XA}, s14, v{XA}
    v_and_b32 v{vTMPC}, 2, v{vQ}
    v_xor_b32 v{vTMPC}, v{vTMPC}, v{vTMPA}
    v_lshl_add_u32 v{XA+2}, v{vTMPC}, 4, v{XA}
    v_and_b32 v{vTMPC}, 1, v{vQ}
    v_lshl_add_u32 v{XA+2}, v{vTMPC}, 3, v{XA+2}
    s_lshl_b32 s12, s{sJ}, 11
    v_add_u32 v{XA+2}, s12, v{XA+2}
    v_xor_b32 v{XA+3}, 16, v{XA+2}
    v_xor_b32 v{XA+4}, 64, v{XA+2}
    v_xor_b32 v{XA+5}, 80, v{XA+2}
    v_lshl_add_u32 v{XA}, v{vTMPB}, 4, v{XA}
    v_xor_b32 v{XA+1}, 64, v{XA}
    s_lshl_b32 s{sHROT}, s{sJ}, 1
    """)
    e.wait_vm_now("x")
    e.stamp(2)
    for s in range(18):
        e(f"ds_read_b128 v[{XF+4*s}:{XF+4*s+3}], v{XA+(s&1)} offset:{(s>>1)*2048}")
        if s == 11: e("s_waitcnt lgkmcnt(8)")
    S0, S1 = TMP + 10, TMP + 11
    e(f"v_mov_b32 v{S0}, 0\nv_mov_b32 v{S1}, 0")
    def dots(s):
        for k in range(4): e(f"v_dot2_f32_bf16 v{S0}, v{XF+4*s+k}, v{vONE}, v{S0}")
        for k in range(4): e(f"v_dot2_f32_bf16 v{S1}, v{XF+4*s+k}, v{XF+4*s+k}, v{S1}")
        if s % 2 == 0 and w1ops: w1ops.pop(0)()
    for s in range(4): dots(s)
    e("s_waitcnt lgkmcnt(6)")
    for i in range(4):
        e(f"ds_read_b64 v[{XR+2*i}:{XR+2*i+1}], v{XA+2+i}")
    for s in range(4, 8): dots(s)
    e("s_waitcnt lgkmcnt(0)")
    for s in range(8, 18): dots(s)
    e("s_nop 2")
    xq_reduce(e, [S0, S1], TMP + 12)
    stats_finish(e, S0, S1, TMP + 12, TMP + 13, TMP + 14)
    e(f"""
    v_rcp_f32 v{TMP+14}, v{TMP+13}
    s_nop 0
    v_mov_b32 v{TMP+15}, v{TMP+14}
    v_mul_f32 v{TMP+16}, -v{TMP+12}, v{TMP+14}
    v_mov_b32 v{TMP+17}, v{TMP+16}
    """)
    w2ops = None
    for r in range(72):
        t = TMP + 18 + 2 * (r % 4)
        e(f"""
        v_lshlrev_b32 v{t}, 16, v{XF+r}
        v_and_b32 v{t+1}, 0xffff0000, v{XF+r}
        v_pk_fma_f32 v[{t}:{t+1}], v[{t}:{t+1}], v[{TMP+14}:{TMP+15}], v[{TMP+16}:{TMP+17}]
        v_cvt_pk_bf16_f32 v{XF+r}, v{t}, v{t+1}
        """)
        if r % 4 == 3 and w1ops:
            w1ops.pop(0)()
        elif r % 8 == 7 and not w1ops:
            if w2ops is None:
                nonce_load()
                line_voff(e, 1152, False)
                w2ops = line_dma_ops(e, R_W2, 1152, RB, 15, sHROT, "w2")
            else:
                w2ops.pop(0)()
    assert not w1ops
    e.stamp(3)
    HA = TMP + 2
    e(f"""
    s_lshl_b32 s12, s{sRG}, 2
    s_and_b32 s13, s3, 2
    s_add_u32 s12, s12, s13
    s_mul_i32 s12, s12, 18432
    s_lshl_b32 s13, s{sJ}, 11
    s_add_u32 s{sT0}, s12, s13          ; (4rg + (w&2))*18432 + 8j*256
    s_and_b32 s13, s3, 1
    s_lshl_b32 s13, s13, 4
    v_add_u32 v{TMP+4}, s13, v{vM}      ; m32
    v_lshrrev_b32 v{TMP+5}, 1, v{vQ}
    """)
    for p in range(2):
        e(f"""
        s_lshl_b32 s12, s{sJ}, 2
        s_add_u32 s12, s12, {2*p}
        v_add_u32 v{vTMPA}, s12, v{TMP+5}              ; G
        v_mul_u32_u24 v{vTMPA}, 57, v{vTMPA}
        v_lshrrev_b32 v{vTMPA}, 9, v{vTMPA}            ; grp
        v_lshlrev_b32 v{vTMPA}, 3, v{vTMPA}
        v_mov_b32 v{vTMPB}, 0x00040103
        v_lshrrev_b32 v{vTMPA}, v{vTMPA}, v{vTMPB}
        v_and_b32 v{vTMPA}, 7, v{vTMPA}
        v_add_u32 v{vTMPA}, v{vTMPA}, v{TMP+4}
        v_subrev_u32 v{vTMPA}, 2, v{vTMPA}             ; dest
        v_cmp_gt_u32 s[{96+2*p}:{97+2*p}], 32, v{vTMPA}
        v_bfe_u32 v{vTMPB}, v{vTMPA}, 4, 1
        v_and_b32 v{vTMPA}, 15, v{vTMPA}
        v_mul_u32_u24 v{vTMPB}, 18432, v{vTMPB}
        v_lshl_add_u32 v{vTMPB}, v{vTMPA}, 4, v{vTMPB}
        v_lshl_add_u32 v{HA+p}, v{vQ}, 8, v{vTMPB}
        """)
    set_bases(e, RA)
    e.wait_vm_now("w1")
    e("s_barrier")
    e.stamp(4)
    abm = lambda s, t, f: [mf(ACC + 4 * t, f"v[{f}:{f+3}]", f"v[{XF+4*s}:{XF+4*s+3}]", s == 0)]
    mfma_stream(e, line_items(e, RA, abm), [], dist=6, batches=[(0, 60, w2ops)])
    e.stamp(5)
    e(f"""
    v_mov_b32 v{TMP+4}, {hex(f32bits(GC0))}
    v_mov_b32 v{TMP+5}, {hex(f32bits(GC1))}
    v_mov_b32 v{TMP+6}, 1.0
    s_add_u32 s12, s{sT0}, {HBUF}
    s_nop 4
    """)
    OUTR = XF
    for half in range(2):
        for p in range(4 * half, 4 * half + 4):
            x0, x1 = ACC + 2 * p, ACC + 2 * p + 1
            e(f"""
            v_cvt_pk_bf16_f32 v{x1}, v{x0}, v{x1}
            v_lshlrev_b32 v{x0}, 16, v{x1}
            v_and_b32 v{x1}, 0xffff0000, v{x1}
            """)
        for ins in interleave([gelu_chain(ACC + 8 * half + i, TMP + 12 + i, TMP + 4, TMP + 5, TMP + 6) for i in range(8)]): e(ins)
        for p in range(4 * half, 4 * half + 4):
            e(f"v_cvt_pk_bf16_f32 v{OUTR+p}, v{ACC+2*p}, v{ACC+2*p+1}")
        for p in range(4 * half, 4 * half + 4):
            e(f"v_cndmask_b32 v{OUTR+p}, 0, v{OUTR+p}, s[{96+2*half}:{97+2*half}]")
        e.vmem(f"buffer_store_dwordx4 v[{OUTR+4*half}:{OUTR+4*half+3}], v{HA+half}, {R(R_WS)}, s12 offen offset:{1024*half} sc1", "st")
    e.stamp(6)
    line_voff(e, 9216, False)
    set_bases(e, RB)
    e(f"""
    s_lshl_b32 s12, s{sRG}, 7
    s_lshl_b32 s{sT1}, s{sJ}, 3
    s_add_u32 s{sT1}, s{sT1}, s12       ; rg*128 + j*8
    s_add_u32 s12, s12, {FH}
    v_lshlrev_b32 v{vFA}, 3, v{vM}
    v_add_u32 v{vFA}, s12, v{vFA}
    s_add_u32 s13, s{sT1}, {FH}
    """)
    e.wait_all()
    nonce_check()
    e(f"""
    s_barrier
    s_cmp_lg_u32 s3, 0
    s_cbranch_scc1 L_nofh
    buffer_store_dwordx2 v[{vNON}:{vNON+1}], v{vL0}, {R(R_WS)}, s13 offen sc1
    L_nofh:
    """)
    e.stamp(7)
    w3a = line_dma_ops(e, R_W3, 9216, RA, sW3C, sROT, "w3a")
    for op in w3a[:NW3A_EARLY]: op()
    poll_issue(e)
    poll_check(e, "0x1ff")
    e.vm = []
    e.stamp(8)
    e(f"""
    s_lshl_b32 s12, s{sRG}, 2
    s_add_u32 s12, s12, s3
    s_mul_i32 s15, s12, 18432
    s_add_u32 s15, s15, {HBUF}
    s_lshl_b32 s14, s{sHROT}, 10
    """)
    e(f"s_mov_b32 s{sT3}, s14\ns_mov_b32 s{sT4}, s15")
    def hload(s):
        def f():
            e(f"s_add_u32 s12, s{sT3}, s{sT4}")
            for i in range(2):
                e.vmem(f"buffer_load_dwordx4 v[{XF+4*(s+i)}:{XF+4*(s+i)+3}], v{vL16}, {R(R_WS)}, s12 offen offset:{1024*i} sc1", f"h{s+i}")
            e(f"s_add_u32 s{sT3}, s{sT3}, 2048\ns_cmp_eq_u32 s{sT3}, 18432\ns_cselect_b32 s{sT3}, 0, s{sT3}")
        return f
    for s in range(0, HPD, 2): hload(s)()
    bt = [(4 * (s - HPD), 4 * (s - HPD) + 1, [hload(s)]) for s in range(HPD, 18, 2)]
    bt.append((4 * (18 - HPD), 72, w3a[NW3A_EARLY:]))
    mfma_stream(e, line_items(e, RB, abm, pre=lambda s: (lambda: e.wait_vm_now(f"h{s}"))), [], dist=6, batches=bt)
    e.stamp(9)
    e(f"""
    s_and_b32 s13, s3, 1
    s_mul_i32 s13, s13, 18432
    s_add_u32 s12, s{sT0}, s13
    s_add_u32 s12, s12, {X1BUF}
    v_mov_b32 v{S0}, 0
    v_mov_b32 v{S1}, 0
    s_nop 3
    """)
    for half in range(2):
        for p in range(4 * half, 4 * half + 4):
            x0, x1 = ACC + 2 * p, ACC + 2 * p + 1
            e(f"""
            v_cvt_pk_bf16_f32 v{x1}, v{x0}, v{x1}
            v_lshlrev_b32 v{x0}, 16, v{x1}
            v_and_b32 v{x1}, 0xffff0000, v{x1}
            v_lshlrev_b32 v{TMP+4}, 16, v{XR+p}
            v_and_b32 v{TMP+5}, 0xffff0000, v{XR+p}
            v_add_f32 v{x0}, v{x0}, v{TMP+4}
            v_add_f32 v{x1}, v{x1}, v{TMP+5}
            v_cvt_pk_bf16_f32 v{OUTR+p}, v{x0}, v{x1}
            """)
        e.vmem(f"buffer_store_dwordx4 v[{OUTR+4*half}:{OUTR+4*half+3}], v{vL16}, {R(R_WS)}, s12 offen offset:{1024*half} sc1", "st")
    for p in range(8): e(f"v_dot2_f32_bf16 v{S0}, v{OUTR+p}, v{vONE}, v{S0}")
    for p in range(8): e(f"v_dot2_f32_bf16 v{S1}, v{OUTR+p}, v{OUTR+p}, v{S1}")
    e(f"""
    s_mul_i32 s12, s{sJ}, 43
    s_lshr_b32 s12, s12, 7
    s_add_u32 s12, s12, s{sJ}
    s_lshl_b32 s12, s12, 3              ; (j + j/3)*8
    s_lshl_b32 s13, s{sRG}, 6
    s_lshl_b32 s14, s3, 4
    s_add_u32 s13, s13, s14
    s_lshl_b32 s13, s13, 7
    s_add_u32 s12, s12, s13
    s_add_u32 s12, s12, {STBUF}
    v_lshlrev_b32 v{vTMPA}, 7, v0
    v_cmp_gt_u32 vcc, 16, v0
    v_mov_b32 v{vTMPB}, 0x7ff00000
    """)
    xq_reduce(e, [S0, S1], TMP + 4)
    e(f"v_cndmask_b32 v{vTMPA}, v{vTMPB}, v{vTMPA}, vcc")
    e.vmem(f"buffer_store_dwordx2 v[{S0}:{S1}], v{vTMPA}, {R(R_WS)}, s12 offen sc1", "st")
    e.stamp(10)
    e(f"s_add_u32 s13, s{sT1}, {FX}\ns_add_u32 s{sT2}, s{sW3C}, 128")
    e.wait_all()
    e(f"""
    s_barrier
    s_cmp_lg_u32 s3, 0
    s_cbranch_scc1 L_nofx
    buffer_store_dwordx2 v[{vNON}:{vNON+1}], v{vL0}, {R(R_WS)}, s13 offen sc1
    L_nofx:
    """)
    w3b = line_dma_ops(e, R_W3, 9216, RB, sT2, sROT, "w3b")
    for op in w3b[:NW3B_EARLY]: op()
    e("s_branch L_cstart")
    e("L_idle:")
    e.vm = []
    e(f"""
    v_lshlrev_b32 v{vTMPA}, 7, v0
    s_sub_u32 s14, s{sIDX}, 18
    s_lshl_b32 s14, s14, 2
    s_add_u32 s14, s14, s3
    s_mul_i32 s15, s{sXCD}, 10
    s_add_u32 s15, s15, s14
    """)
    tcnt = 0
    for rs in (R_W1, R_W2):
        for r_ in range(2):
            e(f"""
            s_add_u32 s12, s15, {56*r_}
            s_sub_u32 s13, s12, 81
            s_cmp_ge_u32 s12, 81
            s_cselect_b32 s12, s13, s12
            s_sub_u32 s13, s12, 81
            s_cmp_ge_u32 s12, 81
            s_cselect_b32 s12, s13, s12
            s_lshl_b32 s12, s12, 13
            """)
            if r_ == 1:
                L = e.label("tch")
                e(f"s_cmp_ge_u32 s14, 25\ns_cbranch_scc1 {L}")
            e(f"buffer_load_dword v{TMP+tcnt}, v{vTMPA}, {R(rs)}, s12 offen")
            if r_ == 1: e(f"{L}:")
            tcnt += 1
    for r_ in range(2):
        e(f"""
        s_add_u32 s12, s14, {56*r_}
        s_lshl_b32 s12, s12, 6
        v_add_u32 v{vTMPB}, s12, v0
        v_mul_u32_u24 v{vTMPC}, 7282, v{vTMPB}
        v_lshrrev_b32 v{vTMPC}, 16, v{vTMPC}           ; row
        v_mul_u32_u24 v{TMP+20}, {9216-9*128}, v{vTMPC}
        v_lshl_add_u32 v{vTMPB}, v{vTMPB}, 7, v{TMP+20}
        s_mul_i32 s13, s{sXCD}, 1152
        buffer_load_dword v{TMP+tcnt}, v{vTMPB}, {R(R_W3)}, s13 offen
        """)
        tcnt += 1
    e(f"""
    s_lshl_b32 s12, s14, 13
    v_add_u32 v{vTMPB}, s12, v{vTMPA}
    v_add_u32 v{vTMPC}, {56*8192}, v{vTMPB}
    v_min_u32 v{vTMPC}, {663552-128}, v{vTMPC}
    s_mul_i32 s13, s{sXCD}, 663552
    buffer_load_dword v{TMP+tcnt}, v{vTMPB}, {R(R_W4)}, s13 offen
    buffer_load_dword v{TMP+tcnt+1}, v{vTMPC}, {R(R_W4)}, s13 offen
    """)
    line_voff(e, 9216, False)
    e(f"""
    s_add_u32 s{sT2}, s{sW3C}, 128
    s_cmp_lt_u32 s{sIDX}, 28
    s_cbranch_scc1 L_idle2
    """)
    for op in single_dma_ops(e, [16, 17], RA, "w"): op()
    e(f"""
    s_waitcnt vmcnt(0)
    s_barrier
    ds_read_b64_tr_b16 v[{XF}:{XF+1}], v{vSG} offset:{RA}
    ds_read_b64_tr_b16 v[{XF+2}:{XF+3}], v{vSG} offset:{RA+256}
    ds_read_b64_tr_b16 v[{XF+4}:{XF+5}], v{vSG} offset:{RA+1024}
    ds_read_b64_tr_b16 v[{XF+6}:{XF+7}], v{vSG} offset:{RA+1024+256}
    s_waitcnt lgkmcnt(0)
    s_barrier
    L_idle2:
    s_mul_i32 s101, s{sRB}, 5
    s_sub_u32 s101, s101, 20
    """)
    e.vm = []
    nonce_load()
    for op in line_dma_ops(e, R_W3, 9216, RA, sW3C, sROT, "w3", issue_rot=101): op()
    for op in line_dma_ops(e, R_W3, 9216, RB, sT2, sROT, "w3", issue_rot=101)[:NW3B_EARLY if False else 18]: op()
    for op in single_dma_ops(e, list(range(16)), RS, "w3"): op()
    e("s_waitcnt vmcnt(0)")
    nonce_check()
    e(f"""
    s_barrier
    s_cmp_lt_u32 s{sIDX}, 28
    s_cbranch_scc1 L_cjoin
    s_lshr_b32 s12, s3, 1
    s_mul_i32 s12, s12, 73728
    s_and_b32 s13, s3, 1
    s_lshl_b32 s13, s13, 6
    v_xor_b32 v{vCUR}, s13, v{vLB}
    v_add_u32 v{vCUR}, s12, v{vCUR}
    v_xor_b32 v{vCUR+1}, 32, v{vCUR}
    v_add_u32 v{vLB2}, 36864, v{vCUR}
    v_add_u32 v{vLB2+1}, 36864, v{vCUR+1}
    v_add_u32 v{vCUR+2}, {RS}, v{vSG}
    v_mov_b32 v{TMP+4}, v{vONE}
    v_mov_b32 v{TMP+5}, v{vONE}
    v_mov_b32 v{TMP+6}, v{vONE}
    v_mov_b32 v{TMP+7}, v{vONE}
    s_nop 1
    """)
    ones = f"v[{TMP+4}:{TMP+7}]"
    e(mf(ACC + 8, ones, f"v[{XF}:{XF+3}]", True))
    e(mf(ACC + 8, ones, f"v[{XF+4}:{XF+7}]", False))
    items = line_items(e, 0, lambda s, t, f: [mf(ACC + 4 * t, ones, f"v[{f}:{f+3}]", s == 0)], tiles=[0, 1])
    for s in range(16):
        f = nextfrag()
        items.append(([f"ds_read_b64_tr_b16 v[{f}:{f+1}], v{vCUR+2} offset:{s*1024}", f"ds_read_b64_tr_b16 v[{f+2}:{f+3}], v{vCUR+2} offset:{s*1024+256}"],
                      [mf(ACC + 8, ones, f"v[{f}:{f+3}]", False)], None))
    mfma_stream(e, items, [], dist=6)
    e(f"""
    s_lshl_b32 s12, s{sFB}, 10
    s_add_u32 s12, s12, {CSBUF}
    s_lshl_b32 s13, s3, 7
    s_add_u32 s13, s13, s12
    v_lshlrev_b32 v{vTMPA}, 2, v0
    v_cmp_gt_u32 vcc, 16, v0
    v_mov_b32 v{vTMPB}, 0x7ff00000
    s_nop 3
    v_cndmask_b32 v{vTMPA}, v{vTMPB}, v{vTMPA}, vcc
    """)
    for t in range(3):
        a = ACC + 4 * t
        dst = f"s13 offen offset:{64*t}" if t < 2 else "s12 offen offset:512"
        e(f"""
        v_and_b32 v{a+1}, 0xffff0000, v{a}
        v_sub_f32 v{a+2}, v{a}, v{a+1}
        v_cvt_pk_bf16_f32 v{a+1}, v{a+1}, v{a+2}
        buffer_store_dword v{a+1}, v{vTMPA}, {R(R_WS)}, {dst} sc1
        """)
    e(f"""
    s_waitcnt vmcnt(0)
    s_barrier
    s_lshl_b32 s13, s{sFB}, 6
    s_add_u32 s13, s13, {FCS}
    s_cmp_lg_u32 s3, 0
    s_cbranch_scc1 L_cjoin
    buffer_store_dwordx2 v[{vNON}:{vNON+1}], v{vL0}, {R(R_WS)}, s13 offen sc1
    L_cjoin:
    L_cstart:
    """)
    e.vm = []
    e.stamp(11)
    def w4_voff(dst, isrc):
        e(f"""
        v_add_u32 v{vTMPA}, {isrc}, v0
        v_mul_u32_u24 v{vTMPB}, 3641, v{vTMPA}
        v_lshrrev_b32 v{vTMPB}, 16, v{vTMPB}           ; row
        v_mul_u32_u24 v{vTMPC}, 18, v{vTMPB}
        v_sub_u32 v{vTMPA}, v{vTMPA}, v{vTMPC}         ; slot
        v_lshrrev_b32 v{vTMPC}, 1, v{vTMPA}            ; tau
        v_cmp_eq_u32 vcc, 0, v{vTMPC}
        v_add_u32 v{vTMPC}, s{sXCD}, v{vTMPC}
        v_and_b32 v{vTMPC}, 7, v{vTMPC}
        v_add_u32 v{vTMPC}, s14, v{vTMPC}
        v_mov_b32 v{dst}, s15                          ; 32 + sig
        v_cndmask_b32 v{vTMPC}, v{vTMPC}, v{dst}, vcc
        v_and_b32 v{vTMPA}, 1, v{vTMPA}
        v_lshl_add_u32 v{vTMPA}, v{vTMPC}, 1, v{vTMPA}
        v_mul_u32_u24 v{dst}, 1152, v{vTMPB}
        v_lshl_add_u32 v{dst}, v{vTMPA}, 4, v{dst}
        """)
    e(f"""
    s_lshl_b32 s12, s{sRB}, 1
    s_lshr_b32 s13, s3, 1
    s_add_u32 s12, s12, s13
    s_lshl_b32 s12, s12, 7
    s_add_u32 s12, s12, {FX}
    v_lshlrev_b32 v{vFA}, 3, v{vM}
    v_add_u32 v{vFA}, s12, v{vFA}
    s_lshl_b32 s13, s{sFB}, 6
    s_add_u32 s13, s13, {FCS}
    v_mov_b32 v{vTMPA}, s13
    v_cmp_eq_u32 vcc, 9, v0
    s_nop 1
    v_cndmask_b32 v{vFA}, v{vFA}, v{vTMPA}, vcc
    """)
    poll_issue(e)
    e(f"s_lshl_b32 s12, s3, 6\ns_add_u32 s13, s12, 256\ns_lshl_b32 s14, s{sSIG}, 3\ns_add_u32 s15, s{sSIG}, 32")
    w4_voff(vW4A, "s12"); w4_voff(vW4B, "s13"); w4_voff(vW4C, "512")
    vGB = XF + 53
    e(f"""
    s_mul_i32 s{sW4B}, s{sXCD}, 663552
    s_lshl_b32 s12, s{sRB}, 3
    s_lshl_b32 s13, s3, 1
    s_add_u32 s{sST0}, s12, s13
    s_lshl_b32 s12, s{sST0}, 3
    s_add_u32 s12, s12, s{sXCD}
    s_mul_i32 s{sGB}, s12, 18432
    s_add_u32 s{sGB}, s{sGB}, {GBUF}
    v_and_b32 v{vTMPA}, 1, v{vQ}
    v_lshlrev_b32 v{vGB}, 8, v{vTMPA}
    v_lshl_add_u32 v{vGB}, v{vM}, 4, v{vGB}
    v_lshrrev_b32 v{vTMPA}, 1, v{vQ}
    v_lshl_add_u32 v{vGB}, v{vTMPA}, 3, v{vGB}
    s_lshl_b32 s12, s{sRB}, 3
    s_add_u32 s12, s12, s{sXCD}
    s_lshl_b32 s12, s12, 2
    s_add_u32 s12, s12, s3
    s_lshl_b32 s12, s12, 7
    s_add_u32 s{sFGB}, s12, {FG}
    s_lshl_b32 s12, s{sSIG}, 3
    s_add_u32 s{sFGO}, s{sFGB}, s12
    s_mul_i32 s15, s{sST0}, 18432
    s_add_u32 s15, s15, {X1BUF}
    s_lshl_b32 s100, s{sROT}, 10
    """)
    set_bases(e, RA)
    poll_check(e, "0x3ff")
    e.vm = []
    e.stamp(12)
    e(f"s_mov_b32 s{sT3}, s100\ns_mov_b32 s{sT4}, s15")
    def x1load(s):
        def f():
            e(f"s_add_u32 s12, s{sT3}, s{sT4}\ns_add_u32 s13, s12, 18432")
            for u in range(2):
                e.vmem(f"buffer_load_dwordx4 a[{72*u+4*s}:{72*u+4*s+3}], v{vL16}, {R(R_WS)}, s{12+u} offen sc1", f"x1{s}")
            e(f"s_add_u32 s{sT3}, s{sT3}, 1024\ns_cmp_eq_u32 s{sT3}, 18432\ns_cselect_b32 s{sT3}, 0, s{sT3}")
        return f
    for s in range(XPD): x1load(s)()
    SL = XF; CS = XF + 16
    def stat_loads():
        e(f"""
        s_lshl_b32 s12, s{sST0}, 11
        s_add_u32 s12, s12, {STBUF}
        v_lshlrev_b32 v{vTMPA}, 7, v{vM}
        v_lshl_add_u32 v{vTMPA}, v{vQ}, 5, v{vTMPA}
        v_mov_b32 v{vTMPC}, 0x7ff00000
        v_cmp_gt_u32 vcc, 48, v0
        s_lshl_b32 s13, s{sFB}, 10
        s_add_u32 s13, s13, {CSBUF}
        v_cndmask_b32 v{vTMPA}, v{vTMPC}, v{vTMPA}, vcc
        v_lshlrev_b32 v{vTMPB}, 2, v0
        v_cmp_gt_u32 vcc, 16, v0
        s_nop 1
        v_cndmask_b32 v{vTMPB}, v{vTMPC}, v{vTMPB}, vcc
        """)
        for u in range(2):
            e.vmem(f"buffer_load_dwordx4 v[{SL+8*u}:{SL+8*u+3}], v{vTMPA}, {R(R_WS)}, s12 offen offset:{2048*u} sc1", "stat")
            e.vmem(f"buffer_load_dwordx2 v[{SL+8*u+4}:{SL+8*u+5}], v{vTMPA}, {R(R_WS)}, s12 offen offset:{2048*u+16} sc1", "stat")
        for t in range(9):
            e.vmem(f"buffer_load_dword v{CS+t}, v{vTMPB}, {R(R_WS)}, s13 offen offset:{64*t} sc1", "stat")
    GK = XF + 28; RBF = XF + 36; RAF = XF + 44
    def stats_setup():
        e.wait_vm_now("stat")
        for u in range(2):
            b = SL + 8 * u
            e(f"""
            v_add_f32 v{b}, v{b}, v{b+2}
            v_add_f32 v{b+1}, v{b+1}, v{b+3}
            v_add_f32 v{b}, v{b}, v{b+4}
            v_add_f32 v{b+1}, v{b+1}, v{b+5}
            """)
            xq_reduce(e, [b, b + 1], b + 2)
            stats_finish(e, b, b + 1, b + 2, GK + 4 * u + 2, b + 3)
            e(f"""
            v_rcp_f32 v{b+3}, v{GK+4*u+2}
            v_cvt_pk_bf16_f32 v{RBF+4*u}, -v{b+2}, -v{b+2}
            v_mov_b32 v{RBF+4*u+1}, 0
            v_mov_b32 v{RBF+4*u+2}, 0
            v_mov_b32 v{RBF+4*u+3}, 0
            v_mul_f32 v{GK+4*u}, {hex(f32bits(GC0))}, v{b+3}
            v_mul_f32 v{b+4}, v{b+3}, v{b+3}
            v_mul_f32 v{b+4}, v{b+4}, v{b+3}
            v_mul_f32 v{GK+4*u+1}, {hex(f32bits(GC1))}, v{b+4}
            """)
        for r in range(8): e(f"v_mov_b32 v{RAF+r}, 0")
    KORD = [(0, 0), (0, 1)] + [(d, i) for d in (1, 2, 3) for i in (0, 1)] + [(0, 2), (0, 3)] + \
           [(d, i) for d in (1, 2, 3) for i in (2, 3)] + [(None, 16), (None, 17)]
    W4ADDR = {}
    for k in range(7): W4ADDR[k] = RA + 2048 + 9216 * k
    for k in range(7, 15): W4ADDR[k] = RB + 9216 * (k - 7)
    W4ADDR[15] = RS
    for k in (16, 17): W4ADDR[k] = RA + 2048 + 9216 * (k - 16)
    def kappa_to(sreg, k):
        d, i = KORD[k]
        if d is None:
            e(f"s_mov_b32 s{sreg}, {i}")
        else:
            e(f"s_add_u32 s{sreg}, s{sSIG}, {d}\ns_and_b32 s{sreg}, s{sreg}, 3\ns_lshl_b32 s{sreg}, s{sreg}, 2\ns_add_u32 s{sreg}, s{sreg}, {i}")
    def w4_dma_ops(ks_list, tag):
        ops = []
        for k in ks_list:
            def opA(k=k):
                kappa_to(12, k)
                e(f"""
                s_lshl_b32 s13, s3, 10
                s_add_u32 s13, s13, {W4ADDR[k]}
                s_mov_b32 m0, s13
                s_mul_i32 s12, s12, {32*1152}
                s_add_u32 s{sT3}, s12, s{sW4B}
                s_add_u32 s{sT4}, s13, 4096
                """)
                e.vmem(f"buffer_load_dwordx4 v{vW4A}, {R(R_W4)}, s{sT3} offen lds", tag)
            def opB(k=k):
                e(f"s_mov_b32 m0, s{sT4}\ns_nop 0")
                e.vmem(f"buffer_load_dwordx4 v{vW4B}, {R(R_W4)}, s{sT3} offen lds", tag)
            ops += [opA, opB]
        for n in range((len(ks_list) + 3) // 4):
            def opC(n=n):
                cand = [ks_list[min(4 * n + w, len(ks_list) - 1)] for w in range(4)]
                e(f"s_mov_b32 s13, {W4ADDR[cand[0]] + 8192}")
                kappa_to(12, cand[0])
                for w in range(1, 4):
                    if cand[w] == cand[w - 1]: continue
                    kappa_to(14, cand[w])
                    e(f"s_cmp_ge_u32 s3, {w}\ns_cselect_b32 s12, s14, s12\ns_cselect_b32 s13, {W4ADDR[cand[w]] + 8192}, s13")
                e(f"s_mov_b32 m0, s13\ns_mul_i32 s12, s12, {32*1152}\ns_add_u32 s12, s12, s{sW4B}")
                e.vmem(f"buffer_load_dwordx4 v{vW4C}, {R(R_W4)}, s12 offen lds", tag)
            ops.append(opC)
        return ops
    OWN = XF + 56
    def ownreg(phi, p, u): return (OWN if phi == 0 else TMP + 24) + 8 * p + 4 * u
    def gfrag(k, u):
        d, i = KORD[k]
        if d == 0:
            r = ownreg(i >> 1, i & 1, u)
            return f"v[{r}:{r+3}]"
        if k < 8: a = 144 + 8 * (k - 2)
        elif k < 16: a = 192 + 8 * (k - 10)
        else: a = 240 + 8 * (k - 16)
        return f"a[{a+4*u}:{a+4*u+3}]"
    CACC = [ACC, ACC + 32, ACC + 64]
    def gelu_fill(phi):
        acc = CACC[phi]
        fl = []
        if phi < 2:
            for p in range(2):
                for u in range(2):
                    regs = [acc + 8 * (2 * p + t) + 4 * u + r for t in range(2) for r in range(4)]
                    o = ownreg(phi, p, u)
                    fl += interleave([gelu_chain(x, TMP + 8 * u + i, GK + 4 * u, GK + 4 * u + 1, GK + 4 * u + 2) for i, x in enumerate(regs)])
                    for q_ in range(4):
                        fl.append(f"v_cvt_pk_bf16_f32 v{o+q_}, v{regs[2*q_]}, v{regs[2*q_+1]}")
                    def st(u=u, o=o, p=p):
                        e(f"s_lshl_b32 s12, s{sSIG}, 12\ns_add_u32 s12, s12, s{sGB}\ns_add_u32 s12, s12, {(2*phi+p)*1024 + u*8*18432}")
                        e.vmem(f"buffer_store_dwordx4 v[{o}:{o+3}], v{vL16}, {R(R_WS)}, s12 offen sc1", f"gst{phi}")
                    fl.append(st)
        else:
            regs = [acc + r for r in range(8)]
            o = TMP + 16
            fl += interleave([gelu_chain(x, TMP + i, GK + 4 * (i >> 2), GK + 4 * (i >> 2) + 1, GK + 4 * (i >> 2) + 2) for i, x in enumerate(regs)])
            for q_ in range(4):
                fl.append(f"v_cvt_pk_bf16_f32 v{o+q_}, v{regs[2*q_]}, v{regs[2*q_+1]}")
            def st():
                e(f"s_lshl_b32 s12, s{sSIG}, 9\ns_add_u32 s12, s12, s{sGB}\ns_add_u32 s12, s12, 16384\ns_add_u32 s13, s12, {8*18432}")
                e.vmem(f"buffer_store_dwordx2 v[{o}:{o+1}], v{vGB}, {R(R_WS)}, s12 offen sc1", "gst2")
                e.vmem(f"buffer_store_dwordx2 v[{o+2}:{o+3}], v{vGB}, {R(R_WS)}, s13 offen sc1", "gst2")
            fl.append(st)
        return fl
    def gflag(phi):
        def f():
            e.wait_vm_now(f"gst{phi}")
            e(f"s_add_u32 s12, s{sFGO}, {32*phi}")
            e.vmem(f"buffer_store_dwordx2 v[{vNON}:{vNON+1}], v{vL0}, {R(R_WS)}, s12 offen sc1", "flagst")
        return f
    def g_poll_issue(phi):
        def f():
            e(f"s_add_u32 s12, s{sFGB}, {32*phi}\nv_lshlrev_b32 v{vFA}, 3, v{vM}\nv_add_u32 v{vFA}, s12, v{vFA}")
            poll_issue(e)
        return f
    def g_loads(ks):
        ops = [lambda: poll_check(e, "0xf")]
        for k in ks:
            def f(k=k):
                kappa_to(12, k)
                e(f"s_lshl_b32 s12, s12, 10\ns_add_u32 s12, s12, s{sGB}\ns_add_u32 s13, s12, {8*18432}")
                for u in range(2):
                    e.vmem(f"buffer_load_dwordx4 {gfrag(k, u)}, v{vL16}, {R(R_WS)}, s{12+u} offen sc1", f"g{k}")
            ops.append(f)
        return ops
    def rank1(acc, tiles, cs0):
        for t in range(tiles):
            ra = RAF + 4 * (t % 2)
            e(f"v_mov_b32 v{ra}, v{CS+cs0+t}\ns_nop 1")
            for u in range(2):
                e(mf(acc + 8 * t + 4 * u, f"v[{ra}:{ra+3}]", f"v[{RBF+4*u}:{RBF+4*u+3}]", False))
    def cm(phi):
        return lambda s, t, f: [mf(CACC[phi] + 8 * t + 4 * u, f"v[{f}:{f+3}]", f"a[{72*u+4*s}:{72*u+4*s+3}]", s == 0) for u in range(2)]
    items = line_items(e, RA, cm(0), pre=lambda s: (lambda: e.wait_vm_now(f"x1{s}")))
    bt = [(4 * (s - XPD), 4 * (s - XPD) + 1, [x1load(s)]) for s in range(XPD, 18)]
    bt.append((4 * (18 - XPD), 4 * (18 - XPD) + 1, [stat_loads]))
    mfma_stream(e, items, [], dist=4, batches=bt)
    stats_setup()
    rank1(CACC[0], 4, 0)
    e.stamp(13)
    set_bases(e, RB)
    e.wait_all()
    e("s_barrier")
    items = line_items(e, RB, cm(1))
    mfma_stream(e, items, [], dist=4, batches=[
        (2, 46, gelu_fill(0)),
        (0, 58, single_dma_ops(e, list(range(16)), RS, "w4a") + single_dma_ops(e, [16, 17], RA, "w4a") + w4_dma_ops(list(range(0, 7)), "w4a")),
        (60, 61, [gflag(0)]),
    ])
    rank1(CACC[1], 4, 4)
    e.wait_vm_now("w4a")
    e("s_barrier")
    e.stamp(14)
    DA = 48
    def mfa(acc, a_, b_, first):
        c = "0" if first else f"a[{acc}:{acc+3}]"
        return f"v_mfma_f32_16x16x32_bf16 a[{acc}:{acc+3}], {a_}, {b_}, {c}"
    def d_item(k, tau, first_of_k, first=None):
        f = nextfrag()
        rd = gen2.tr_reads(f, vTR4, W4ADDR[k] + tau * 32, 2304)
        ms = [mfa(DA + 8 * tau + 4 * u, f"v[{f}:{f+3}]", gfrag(k, u), k == 0) for u in range(2)]
        pre = (lambda k=k: e.wait_vm_now(f"g{k}")) if first_of_k else None
        return (rd, ms, pre)
    e(f"v_add_u32 v{vCUR}, {RS}, v{vSG}")
    items = []
    for s in range(18):
        f = nextfrag()
        if s < 16:
            rd = [f"ds_read_b64_tr_b16 v[{f}:{f+1}], v{vCUR} offset:{s*1024}", f"ds_read_b64_tr_b16 v[{f+2}:{f+3}], v{vCUR} offset:{s*1024+256}"]
        else:
            rd = [f"ds_read_b64_tr_b16 v[{f}:{f+1}], v{vSG} offset:{RA+(s-16)*1024}", f"ds_read_b64_tr_b16 v[{f+2}:{f+3}], v{vSG} offset:{RA+(s-16)*1024+256}"]
        items.append((rd, cm(2)(s, 0, f), None))
    g1 = gelu_fill(1)
    h1 = len(g1) // 2
    w4b = w4_dma_ops(list(range(7, 15)), "w4b")
    mfma_stream(e, items, [], dist=4, batches=[
        (2, 18, g1[:h1]),
        (0, 18, w4b[:6]),
        (4, 5, [g_poll_issue(0)]),
        (14, 18, g_loads(list(range(2, 8)))),
    ])
    rank1(CACC[2], 1, 8)
    e("s_barrier")
    items = [d_item(k, tau, tau == 0) for k in range(0, 7) for tau in range(9)]
    mfma_stream(e, items, [], batches=[
        (0, 16, g1[h1:]),
        (16, 22, gelu_fill(2)),
        (0, 40, w4b[6:] + w4_dma_ops([15], "w4b")),
        (30, 31, [gflag(1)]),
        (36, 37, [gflag(2)]),
        (50, 51, [g_poll_issue(1)]),
    ])
    e.wait_vm_now("w4b")
    e("s_barrier")
    e.stamp(15)
    XR2 = TMP + 16
    def fin_prep():
        e(f"""
        s_lshl_b32 s12, s{sRB}, 2
        s_add_u32 s12, s12, s{sSIG}
        s_mul_i32 s12, s12, 9
        s_lshl_b32 s{sPB}, s12, 15
        s_lshl_b32 s13, s3, 10
        s_add_u32 s{sPB}, s{sPB}, s13
        s_add_u32 s{sPB}, s{sPB}, {PBUF}
        s_lshl_b32 s{sFPB}, s12, 8
        s_lshl_b32 s13, s3, 6
        s_add_u32 s{sFPB}, s{sFPB}, s13
        s_add_u32 s{sFPB}, s{sFPB}, {FP}
        s_lshl_b32 s12, s{sSIG}, 3
        s_add_u32 s12, s12, s{sXCD}
        s_lshl_b32 s12, s12, 9
        s_mul_i32 s13, s{sST0}, 18432
        s_add_u32 s12, s12, s13
        s_add_u32 s12, s12, {X1BUF}
        s_add_u32 s13, s12, 18432
        """)
        e.vmem(f"buffer_load_dwordx2 v[{XR2}:{XR2+1}], v{vGB}, {R(R_WS)}, s12 offen sc1", "xr")
        e.vmem(f"buffer_load_dwordx2 v[{XR2+2}:{XR2+3}], v{vGB}, {R(R_WS)}, s13 offen sc1", "xr")
        e(f"""
        s_add_u32 s12, s{sSIG}, 32
        s_lshl_b32 s12, s12, 9
        s_lshl_b32 s13, s{sRB}, 3
        s_add_u32 s13, s13, s{sXCD}
        s_mul_i32 s13, s13, 18432
        s_add_u32 s12, s12, s13
        s_add_u32 s12, s12, {X1BUF}
        """)
        e.vmem(f"buffer_load_dwordx2 v[{XR2+4}:{XR2+5}], v{vGB}, {R(R_WS)}, s12 offen sc1", "xr")
    KP2 = 12
    items = [d_item(k, tau, tau == 0) for k in range(7, KP2) for tau in range(9)]
    mfma_stream(e, items, [], batches=[
        (0, 12, g_loads(list(range(10, 16)))),
        (12, 20, w4_dma_ops([16, 17], "w4d") + [g_poll_issue(2)]),
        (20, 24, [fin_prep]),
        (30, 34, g_loads([16, 17])),
    ])
    e.wait_vm_now("w4d")
    e("s_barrier")
    def tsel(tau):
        if tau == 0: e("s_mov_b32 s12, 8")
        else: e(f"s_add_u32 s12, s{sXCD}, {tau}\ns_and_b32 s12, s12, 7")
    def p_epi(tau):
        o = ACC + 8 * (tau % 2)
        q_ = ACC + 16 + 4 * tau
        fl = [f"v_accvgpr_read_b32 v{o+r}, a{DA+8*tau+r}" for r in range(8)]
        fl += [f"v_cvt_pk_bf16_f32 v{q_+p}, v{o+2*p}, v{o+2*p+1}" for p in range(4)]
        def st():
            tsel(tau)
            e(f"s_lshl_b32 s12, s12, 3\ns_add_u32 s12, s12, s{sXCD}\ns_lshl_b32 s12, s12, 12\ns_add_u32 s12, s12, s{sPB}")
            e.vmem(f"buffer_store_dwordx4 v[{q_}:{q_+3}], v{vL16}, {R(R_WS)}, s12 offen sc1", f"p{tau}")
        fl.append(st)
        return fl
    def p_flag(tau):
        def f():
            e.wait_vm_now(f"p{tau}")
            tsel(tau)
            e(f"s_lshl_b32 s12, s12, 5\ns_add_u32 s12, s12, s{sXCD}\ns_lshl_b32 s12, s12, 3\ns_add_u32 s12, s12, s{sFPB}")
            e.vmem(f"buffer_store_dwordx2 v[{vNON}:{vNON+1}], v{vL0}, {R(R_WS)}, s12 offen sc1", "flagst")
        return f
    nk = 18 - KP2
    items = [d_item(k, tau, tau == 0) for tau in range(9) for k in range(KP2, 18)]
    bt = []
    FD = 5
    for tau in range(8):
        bt.append((nk * (tau + 1) + 2, nk * (tau + 2) - 1, p_epi(tau)))
        if tau + FD <= 8:
            bt.append((nk * (tau + FD) + nk - 1, nk * (tau + FD) + nk, [p_flag(tau)]))
    mfma_stream(e, items, [], batches=bt)
    for tau in range(9 - FD, 8):
        p_flag(tau)()
    def finish(vals, nvals, xr, outreg):
        for p in range(nvals // 2):
            x0, x1 = vals + 2 * p, vals + 2 * p + 1
            e(f"""
            v_cvt_pk_bf16_f32 v{x1}, v{x0}, v{x1}
            v_lshlrev_b32 v{x0}, 16, v{x1}
            v_and_b32 v{x1}, 0xffff0000, v{x1}
            v_lshlrev_b32 v{vTMPA}, 16, v{xr+p}
            v_and_b32 v{vTMPB}, 0xffff0000, v{xr+p}
            v_add_f32 v{x0}, v{x0}, v{vTMPA}
            v_add_f32 v{x1}, v{x1}, v{vTMPB}
            v_cvt_pk_bf16_f32 v{outreg+p}, v{x0}, v{x1}
            """)
    vOA = XF + 54
    PL = XF
    V = TMP
    e(f"""
    v_mul_u32_u24 v{vOA}, 1152, v{vM}
    v_lshl_add_u32 v{vOA}, v{vQ}, 3, v{vOA}
    v_lshlrev_b32 v{vFA}, 3, v{vM}
    s_add_u32 s12, s{sFPB}, {8*256}
    v_add_u32 v{vFA}, s12, v{vFA}
    s_lshr_b32 s12, s{sXCD}, 1
    s_cmp_lg_u32 s12, s3
    s_cbranch_scc1 L_no8
    """)
    save = list(e.vm)
    poll_issue(e)
    poll_check(e, "0xff")
    e(f"""
    s_and_b32 s12, s{sXCD}, 1
    s_lshl_b32 s12, s12, 3
    s_add_u32 s12, s12, s{sPB}
    s_add_u32 s12, s12, {8*32768}
    """)
    for src in range(8):
        e(f"buffer_load_dwordx2 v[{PL+2*src}:{PL+2*src+1}], v{vL16}, {R(R_WS)}, s12 offen sc1\ns_add_u32 s12, s12, 4096")
    e("s_waitcnt vmcnt(0)")
    for p in range(2):
        e(f"v_lshlrev_b32 v{V+2*p}, 16, v{PL+p}\nv_and_b32 v{V+2*p+1}, 0xffff0000, v{PL+p}")
    for src in range(1, 8):
        for p in range(2):
            e(f"""
            v_lshlrev_b32 v{vTMPA}, 16, v{PL+2*src+p}
            v_and_b32 v{vTMPB}, 0xffff0000, v{PL+2*src+p}
            v_add_f32 v{V+2*p}, v{V+2*p}, v{vTMPA}
            v_add_f32 v{V+2*p+1}, v{V+2*p+1}, v{vTMPB}
            """)
    finish(V, 4, XR2 + 4, TMP + 8)
    e(f"""
    s_lshl_b32 s12, s{sRB}, 3
    s_add_u32 s12, s12, s{sXCD}
    s_mul_i32 s12, s12, {16*1152}
    s_lshl_b32 s13, s{sSIG}, 5
    s_add_u32 s12, s12, s13
    s_add_u32 s12, s12, 1024
    buffer_store_dwordx2 v[{TMP+8}:{TMP+9}], v{vOA}, {R(R_OUT)}, s12 offen
    L_no8:
    """)
    e.vm = save
    e(f"""
    s_lshl_b32 s12, s{sXCD}, 8
    s_add_u32 s12, s12, s{sFPB}
    v_lshlrev_b32 v{vFA}, 3, v{vM}
    v_add_u32 v{vFA}, s12, v{vFA}
    s_lshl_b32 s15, 1, s{sXCD}
    s_xor_b32 s15, s15, 0xff
    """)
    poll_issue(e)
    for r in range(8):
        e(f"v_accvgpr_read_b32 v{V+r}, a{DA+64+r}")
    poll_check(e, "s15")
    e(f"s_lshl_b32 s13, s{sXCD}, 15\ns_add_u32 s13, s13, s{sPB}")
    for d in range(1, 8):
        e(f"s_add_u32 s12, s{sXCD}, {d}\ns_and_b32 s12, s12, 7\ns_lshl_b32 s12, s12, 12\ns_add_u32 s12, s12, s13")
        e.vmem(f"buffer_load_dwordx4 v[{PL+4*(d-1)}:{PL+4*(d-1)+3}], v{vL16}, {R(R_WS)}, s12 offen sc1", f"pl{d}")
    for d in range(1, 8):
        e.wait_vm_now(f"pl{d}")
        for p in range(4):
            r_ = PL + 4 * (d - 1) + p
            e(f"""
            v_lshlrev_b32 v{vTMPA}, 16, v{r_}
            v_and_b32 v{vTMPB}, 0xffff0000, v{r_}
            v_add_f32 v{V+2*p}, v{V+2*p}, v{vTMPA}
            v_add_f32 v{V+2*p+1}, v{V+2*p+1}, v{vTMPB}
            """)
    finish(V, 8, XR2, TMP + 8)
    e(f"""
    s_mul_i32 s12, s{sST0}, {16*1152}
    s_lshl_b32 s13, s{sSIG}, 8
    s_add_u32 s12, s12, s13
    s_lshl_b32 s13, s{sXCD}, 5
    s_add_u32 s12, s12, s13
    s_add_u32 s13, s12, {16*1152}
    buffer_store_dwordx2 v[{TMP+8}:{TMP+9}], v{vOA}, {R(R_OUT)}, s12 offen
    buffer_store_dwordx2 v[{TMP+10}:{TMP+11}], v{vOA}, {R(R_OUT)}, s13 offen
    """)
    if STAMPS:
        e(f"""
        s_memrealtime s[96:97]
        s_waitcnt lgkmcnt(0)
        s_lshl_b32 s12, s2, 2
        s_add_u32 s12, s12, s3
        s_lshl_b32 s12, s12, 8
        s_add_u32 s12, s12, {STAMPBUF}
        """)
        for i in range(17):
            e(f"""
            v_mov_b32 v{TMP+20}, s{64+2*i}
            v_mov_b32 v{TMP+21}, s{65+2*i}
            buffer_store_dwordx2 v[{TMP+20}:{TMP+21}], v{vL0}, {R(R_WS)}, s12 offen offset:{8*i}
            s_nop 1
            """)
    if DBGS is not None:
        e(f"""
        s_cmp_lg_u32 s2, {DBGS}
        s_cbranch_scc1 L_end
        s_cmp_lg_u32 s3, 0
        s_cbranch_scc1 L_end
        """)
        for n_, i in enumerate([0, 2, 3, 5, 7, 8, 9, 10, 11, 12, 13, 14, 15, 16]):
            e(f"""
            v_mov_b32 v{TMP+20}, s{64+2*i}
            v_sub_u32 v{TMP+20}, v{TMP+20}, v{vNON}
            buffer_store_dword v{TMP+20}, v{vL0}, {R(R_DBG)}, 0 offen offset:{8+4*n_}
            s_nop 1
            """)
    if DBGT:
        e(f"""
        s_memrealtime s[96:97]
        s_waitcnt lgkmcnt(0)
        v_mov_b32 v{TMP+20}, s96
        v_sub_u32 v{TMP+20}, v{TMP+20}, v{vNON}
        buffer_atomic_umax v{TMP+20}, v{vL0}, {R(R_DBG)}, 0 offen offset:16
        """)
    e("L_end:\ns_endpgm")
    return e

DBGT = False
DBGS = None
NW3A_EARLY = 8
NW1_EARLY = 4
HPD = 8
XPD = 5
NW3B_EARLY = 18

def build_text(code_size):
    e = gen()
    s = HEADER + f"; @launch grid=(256,1,1) block=(256,1,1) lds={LDS_TOTAL}\n"
    s += '.amdgcn_target "amdgcn-amd-amdhsa--gfx950"\n.text\n' + e.text().replace("CODE_SIZE", hex(code_size)) + kd(NAME, 512, 256)
    return s

def main(path):
    import subprocess
    s = build_text(0x1000)
    open(path, "w").write(s)
    r = subprocess.run(f"clang -x assembler -target amdgcn-amd-amdhsa -mcpu=gfx950 -c {path} -o _g4.o && llvm-readelf -S _g4.o", shell=True, capture_output=True, text=True)
    if r.returncode:
        print(r.stderr[:3000]); sys.exit(1)
    sz = int(re.search(r"\.text\s+PROGBITS\s+\w+\s+\w+\s+(\w+)", r.stdout).group(1), 16)
    print("code size", sz)
    s = build_text((sz - 128) & ~3)
    open(path, "w").write(s)

if __name__ == "__main__":
    STAMPS = "--stamps" in sys.argv
    DBGT = "--dbgt" in sys.argv
    if "--dbgs" in sys.argv:
        DBGS = int(sys.argv[sys.argv.index("--dbgs") + 1]); STAMPS = True
    main(sys.argv[1])
```
